```python
import torch

def _softmax(x, axis=-1):
    return torch.softmax(x, dim=axis)

def _gelu(x):
    return torch.nn.functional.gelu(x, approximate='tanh')

def _silu(x):
    return torch.nn.functional.silu(x)

def _sigmoid(x):
    return torch.sigmoid(x)

def _layernorm(x, axis=-1, eps=1e-05):
    m = x.mean(dim=axis, keepdim=True)
    v = x.var(dim=axis, keepdim=True, unbiased=False)
    return (x - m) / torch.sqrt(v + eps)

def _scatter_add(tgt, idx, src, axis=0):
    return tgt.clone().index_add_(axis, idx, src)

def _segment_sum(src, seg, n):
    out = torch.zeros((n,) + src.shape[1:], dtype=src.dtype)
    return out.index_add_(0, seg, src)

def _pad(x, pw):
    flat = tuple((v for pair in reversed(pw) for v in pair))
    return torch.nn.functional.pad(x, flat)
kernel_name = 'gather_scatter__tensor_product_equiv_equiformer__graph'

def setup_inputs():

    _w = lambda a: (lambda t: t.to(torch.bfloat16) if t.is_floating_point() else t)(torch.as_tensor(a))
    N, deg, C, De = (10000, 64, 64, max(4, 1))
    E = N * deg
    src = (lambda lo, hi, *s: torch.randint(lo, hi, s))(0, N, E).to(torch.int64)
    dst = (lambda lo, hi, *s: torch.randint(lo, hi, s))(0, N, E).to(torch.int64)
    rvec = (lambda *s: torch.randn(*s, dtype=torch.bfloat16) * 0.05)(E, 3).to(float)
    rn = (torch.linalg.norm(rvec, dim=-1, keepdim=True) + 1e-06).to(float)
    rhat = (rvec / rn).to(float)
    eps = torch.zeros((3, 3, 3), dtype=float)
    eps[0, 1, 2] = eps[1, 2, 0] = eps[2, 0, 1] = 1.0
    eps[0, 2, 1] = eps[2, 1, 0] = eps[1, 0, 2] = -1.0
    return {'x': _w((lambda *s: torch.randn(*s, dtype=torch.bfloat16) * 0.4)(N, 4 * C).to(float)), 'rhat': _w(rhat), 'e_attr': _w((lambda *s: torch.randn(*s, dtype=torch.bfloat16) * 0.4)(E, De).to(float)), 'src': _w(src), 'dst': _w(dst), 'w_rad': _w((lambda *s: torch.randn(*s, dtype=torch.bfloat16) * 0.4)(De, 5 * C).to(float)), 'w_si0': _w((lambda *s: torch.randn(*s, dtype=torch.bfloat16) * 0.4)(2 * C, C).to(float)), 'w_si1': _w((lambda *s: torch.randn(*s, dtype=torch.bfloat16) * 0.05)(3 * C, C).to(float)), 'cg_eps': _w(eps)}

def reference(x, rhat, e_attr, src, dst, w_rad, w_si0, w_si1, cg_eps):
    N = x.shape[0]
    C = w_si0.shape[1]
    E = rhat.shape[0]
    x0 = x[:, :C].clone()
    x1 = x[:, C:].reshape(N, 3, C)
    R = (e_attr @ w_rad).reshape(E, 5, C)
    f0 = x0[src]
    f1 = x1[src]
    Y1 = rhat
    p00_0 = f0 * R[:, 0, :]
    p11_0 = torch.einsum('ejc,ej->ec', f1, Y1) * R[:, 1, :]
    p01_1 = torch.einsum('ec,ej->ejc', f0, Y1) * R[:, 2, :][:, None, :]
    p10_1 = f1 * R[:, 3, :][:, None, :]
    p11_1 = torch.einsum('ijk,ekc,ej->eic', cg_eps, f1, Y1) * R[:, 4, :][:, None, :]
    m0 = torch.concatenate([p00_0, p11_0], axis=-1) @ w_si0
    m1 = torch.einsum('ejp,pc->ejc', torch.concatenate([p01_1, p10_1, p11_1], axis=-1), w_si1)
    agg0 = _segment_sum(m0, dst, N)
    agg1 = _segment_sum(m1.reshape(E, 3 * C), dst, N).reshape(N, 3, C)
    gate = _sigmoid(agg0)
    out1 = agg1 * gate[:, None, :]
    return torch.concatenate([agg0, out1.reshape(N, 3 * C)], axis=-1)
```

```python
import sys

N = 10000
E = 640000
NCH = 250
CH = 2560
NB = 250
BN = 40

WS_TAB = 0x0
WS_WRED = 0x40000
WS_WFRAG = 0x44000
WS_RECB = 0x50000
WS_RECA = 0x100000
WS_SIZE = WS_RECA + E * 16

K1_NAME = "gs_part_kernel"
K2_NAME = "gather_scatter__tensor_product_equiv_equiformer__graph_kernel"


class Asm:
    def __init__(self):
        self.L = []

    def __call__(self, s):
        for line in s.split("\n"):
            line = line.strip()
            if not line:
                continue
            if line.endswith(":"):
                self.L.append(line)
            else:
                self.L.append("  " + line)

    def text(self):
        return "\n".join(self.L) + "\n"


def srd(a, s, base_lo, base_hi, size):
    a(f"s_mov_b32 s{s}, s{base_lo}")
    a(f"s_mov_b32 s{s+1}, s{base_hi}")
    a(f"s_mov_b32 s{s+2}, {size}")
    a(f"s_mov_b32 s{s+3}, 0x20000")


def scan_add(a, v, full=True):
    for sh in (1, 2, 4, 8):
        a("s_nop 1")
        a(f"v_add_u32_dpp v{v}, v{v}, v{v} row_shr:{sh} row_mask:0xf bank_mask:0xf bound_ctrl:1")
    if full is False:
        return
    a("s_nop 1")
    a(f"v_add_u32_dpp v{v}, v{v}, v{v} row_bcast:15 row_mask:0xa bank_mask:0xf")
    if full == "half":
        return
    a("s_nop 1")
    a(f"v_add_u32_dpp v{v}, v{v}, v{v} row_bcast:31 row_mask:0xc bank_mask:0xf")


def descriptor(name, vgpr, sgpr):
    return f""".section .rodata,"a"
.p2align 6
.amdhsa_kernel {name}
  .amdhsa_next_free_vgpr {vgpr}
  .amdhsa_next_free_sgpr {sgpr}
  .amdhsa_accum_offset {(vgpr + 3) // 4 * 4}
  .amdhsa_group_segment_fixed_size 0
  .amdhsa_kernarg_size 96
  .amdhsa_user_sgpr_count 2
  .amdhsa_user_sgpr_kernarg_segment_ptr 1
  .amdhsa_system_sgpr_workgroup_id_x 1
.end_amdhsa_kernel
.text
"""


K1_THREADS = 640
K1_CNT = 0
K1_START = 1024
K1_RB = 2048
K1_RA = 4608
K1_LDS = K1_RA + CH * 16


def gen_k1(cfg):
    NPH = cfg["NPH"]
    a = Asm()
    n = "k1"
    a(f".globl {K1_NAME}\n.p2align 8\n.type {K1_NAME},@function\n{K1_NAME}:")
    a(f"s_cmp_ge_u32 s2, 255\ns_cbranch_scc1 {n}_end")
    a("s_load_dwordx4 s[4:7], s[0:1], 0")
    a("s_load_dwordx4 s[8:11], s[0:1], 16")
    a("s_load_dwordx4 s[12:15], s[0:1], 32")
    a("s_load_dwordx4 s[16:19], s[0:1], 48")
    a("s_load_dwordx2 s[20:21], s[0:1], 88")
    a(f"s_cmp_ge_u32 s2, {NCH}\ns_cbranch_scc1 {n}_prep")
    a("v_lshlrev_b32 v1, 3, v0")
    a("v_lshlrev_b32 v2, 4, v0")
    a("v_mul_u32_u24 v3, 12, v0")
    a("v_lshlrev_b32 v4, 5, v0")
    a("v_lshlrev_b32 v5, 2, v0")
    a(f"s_mul_i32 s48, s2, {CH*4}")
    a(f"s_add_u32 s49, s48, {CH*2}")
    a(f"s_mul_i32 s50, s2, {CH*8}")
    a(f"s_add_u32 s51, s50, {CH*4}")
    a(f"s_mul_i32 s52, s2, {CH*6}")
    a(f"s_add_u32 s53, s52, {CH*3}")
    a("v_mov_b32 v6, 0")
    a("v_cmp_gt_u32 vcc, 256, v0")
    a("s_and_saveexec_b64 s[54:55], vcc")
    a(f"s_cbranch_execz {n}_z")
    a(f"ds_write_b32 v5, v6 offset:{K1_CNT}")
    a(f"{n}_z:")
    a("s_or_b64 exec, exec, s[54:55]")
    a("s_waitcnt lgkmcnt(0)")
    srd(a, 24, 4, 5, N * 512)
    srd(a, 28, 6, 7, E * 6)
    srd(a, 32, 8, 9, E * 8)
    srd(a, 36, 10, 11, E * 4)
    srd(a, 40, 12, 13, E * 4)
    srd(a, 44, 20, 21, WS_SIZE)
    a("buffer_load_dwordx2 v[10:11], v1, s[40:43], s48 offen")
    a("buffer_load_dwordx2 v[12:13], v1, s[40:43], s49 offen")
    a("buffer_load_dwordx2 v[14:15], v1, s[36:39], s48 offen")
    a("buffer_load_dwordx2 v[16:17], v1, s[36:39], s49 offen")
    a("buffer_load_dwordx4 v[20:23], v2, s[32:35], s50 offen")
    a("buffer_load_dwordx4 v[24:27], v2, s[32:35], s51 offen")
    a("buffer_load_dwordx3 v[28:30], v3, s[28:31], s52 offen")
    a("buffer_load_dwordx3 v[32:34], v3, s[28:31], s53 offen")
    a("buffer_load_dwordx4 v[36:39], v4, s[24:27], s50 offen")
    a("buffer_load_dwordx4 v[40:43], v4, s[24:27], s50 offen offset:16")
    a("s_barrier")
    a("v_mov_b32 v7, 1")
    a("s_waitcnt vmcnt(6)")
    for j in range(4):
        d, s, bk, bn = 10 + j, 14 + j, 44 + j, 48 + j
        a(f"v_mul_u32_u24 v{bk}, 0xcccd, v{d}")
        a(f"v_lshrrev_b32 v{bk}, 21, v{bk}")
        a(f"v_mul_u32_u24 v8, 40, v{bk}")
        a(f"v_sub_u32 v8, v{d}, v8")
        a(f"v_and_b32 v9, 3, v8")
        a(f"v_lshrrev_b32 v8, 2, v8")
        a(f"v_lshl_add_u32 v{bn}, v9, 5, v8")
        if NPH == 2:
            a(f"v_cmp_le_u32 vcc, {N//2}, v{s}")
            a(f"v_add_u32 v9, 10, v{bn}")
            a("s_nop 0")
            a(f"v_cndmask_b32 v{bn}, v{bn}, v9, vcc")
        a(f"v_lshlrev_b32 v{bk}, 2, v{bk}")
        a(f"ds_add_rtn_u32 v{52+j}, v{bk}, v7 offset:{K1_CNT}")
    a("s_waitcnt lgkmcnt(0)")
    a("s_barrier")
    a("v_and_b32 v56, 63, v0")
    a("v_lshlrev_b32 v57, 4, v56")
    a(f"ds_read_b128 v[60:63], v57 offset:{K1_CNT}")
    a("s_waitcnt lgkmcnt(0)")
    a("v_add_u32 v58, v60, v61")
    a("v_add_u32 v59, v62, v63")
    a("v_add_u32 v58, v58, v59")
    a("v_mov_b32 v59, v58")
    scan_add(a, 59)
    a("v_sub_u32 v64, v59, v58")
    a("v_add_u32 v65, v64, v60")
    a("v_add_u32 v66, v65, v61")
    a("v_add_u32 v67, v66, v62")
    a(f"ds_write_b128 v57, v[64:67] offset:{K1_START}")
    a("v_lshrrev_b32 v8, 6, v0")
    a("s_nop 0")
    a("v_readfirstlane_b32 s56, v8")
    a("s_lshl_b32 s57, s2, 10")
    a(f"s_cmp_lg_u32 s56, 0\ns_cbranch_scc1 {n}_notab")
    for k in range(4):
        a(f"v_lshl_or_b32 v{68+k}, v{60+k}, 16, v{64+k}")
    a(f"buffer_store_dwordx4 v[68:71], v57, s[44:47], s57 offen offset:{WS_TAB}")
    a(f"{n}_notab:")
    a("s_waitcnt lgkmcnt(0)")
    for j in range(4):
        a(f"ds_read_b32 v{72+j}, v{44+j} offset:{K1_START}")
    a("s_waitcnt lgkmcnt(0)")
    for j in range(4):
        a(f"v_add_u32 v{72+j}, v{72+j}, v{52+j}")
    for j in range(4):
        a(f"v_add_u32 v8, {K1_RB}, v{72+j}")
        a(f"ds_write_b8 v8, v{48+j}")
        a(f"v_lshlrev_b32 v{72+j}, 4, v{72+j}")
        a(f"v_add_u32 v{72+j}, {K1_RA}, v{72+j}")
    a("s_waitcnt vmcnt(2)")
    for r in range(2):
        ea, rh, sj = 20 + 4 * r, 28 + 4 * r, 14 + 2 * r
        a(f"v_alignbit_b32 v{76+2*r}, v{rh+2}, v{rh+1}, 16")
        a(f"v_alignbit_b32 v{77+2*r}, v{sj+1}, v{rh+2}, 16")
        a(f"v_and_b32 v{rh+1}, 0xffff, v{rh+1}")
        a(f"v_lshl_or_b32 v{rh+1}, v{sj}, 16, v{rh+1}")
        a(f"ds_write2_b64 v{72+2*r}, v[{ea}:{ea+1}], v[{rh}:{rh+1}] offset0:0 offset1:1")
        a(f"ds_write2_b64 v{73+2*r}, v[{ea+2}:{ea+3}], v[{76+2*r}:{77+2*r}] offset0:0 offset1:1")
    a("s_waitcnt lgkmcnt(0)")
    a("s_barrier")
    for k in range(4):
        a(f"ds_read_b128 v[{80+4*k}:{83+4*k}], v2 offset:{K1_RA + k*K1_THREADS*16}")
    a(f"ds_read_b32 v96, v5 offset:{K1_RB}")
    a(f"s_mul_i32 s58, s2, {CH*16}\ns_add_u32 s58, s58, {WS_RECA}")
    a(f"s_mul_i32 s59, s2, {CH}\ns_add_u32 s59, s59, {WS_RECB}")
    for k in range(4):
        a(f"s_waitcnt lgkmcnt({4-k})")
        a(f"buffer_store_dwordx4 v[{80+4*k}:{83+4*k}], v2, s[44:47], s58 offen")
        if k < 3:
            a(f"s_add_u32 s58, s58, {K1_THREADS*16}")
    a("s_waitcnt lgkmcnt(0)")
    a("buffer_store_dword v96, v5, s[44:47], s59 offen")
    a("s_endpgm")

    a(f"{n}_prep:")
    a("s_waitcnt lgkmcnt(0)")
    srd(a, 24, 14, 15, 4 * 320 * 2)
    srd(a, 28, 16, 17, 128 * 64 * 2)
    srd(a, 32, 18, 19, 192 * 64 * 2)
    srd(a, 44, 20, 21, WS_SIZE)
    a(f"s_cmp_lg_u32 s2, {NCH}\ns_cbranch_scc1 {n}_frag")
    for it in range(7):
        a(f"v_add_u32 v1, {it*K1_THREADS}, v0")
        a("v_cmp_gt_u32 vcc, 4096, v1")
        a("s_and_saveexec_b64 s[54:55], vcc")
        a(f"s_cbranch_execz {n}_wr{it}")
        a("v_lshrrev_b32 v2, 10, v1")
        a("v_bfe_u32 v3, v1, 8, 2")
        a("v_bfe_u32 v4, v1, 2, 4")
        a("v_bfe_u32 v5, v1, 6, 2")
        a("v_and_b32 v6, 3, v1")
        a("v_lshl_add_u32 v7, v3, 4, v4")
        a("v_mov_b32 v8, 4")
        a("v_cmp_eq_u32 vcc, v5, v2\ns_nop 1\nv_cndmask_b32 v8, v8, 1, vcc")
        a("v_cmp_eq_u32 vcc, 0, v5\ns_nop 1\nv_cndmask_b32 v8, v8, 3, vcc")
        a("v_mov_b32 v9, 2")
        a("v_cmp_eq_u32 vcc, 0, v5\ns_nop 1\nv_cndmask_b32 v9, v9, 0, vcc")
        a("v_cmp_eq_u32 vcc, 0, v2\ns_nop 1\nv_cndmask_b32 v8, v8, v9, vcc")
        a("v_mul_u32_u24 v10, 320, v6")
        a("v_lshl_add_u32 v10, v8, 6, v10")
        a("v_add_u32 v10, v10, v7")
        a("v_lshlrev_b32 v10, 1, v10")
        a("buffer_load_ushort v11, v10, s[24:27], 0 offen")
        a("v_subrev_u32 v12, 1, v2")
        a("v_mov_b32 v13, v5")
        a("v_cmp_eq_u32 vcc, 3, v5\ns_nop 1\nv_cndmask_b32 v13, v13, 0, vcc")
        a("v_cmp_ne_u32 vcc, v12, v13")
        a("v_cmp_eq_u32 s[56:57], 4, v8")
        a("s_nop 1\ns_and_b64 vcc, vcc, s[56:57]")
        a("v_mov_b32 v14, 0\nv_mov_b32 v15, 0x80000000")
        a("s_nop 1\nv_cndmask_b32 v14, v14, v15, vcc")
        a("s_waitcnt vmcnt(0)")
        a("v_lshlrev_b32 v11, 16, v11")
        a("v_xor_b32 v11, v11, v14")
        a("v_lshlrev_b32 v1, 2, v1")
        a(f"s_mov_b32 s58, {WS_WRED}")
        a("buffer_store_dword v11, v1, s[44:47], s58 offen")
        a(f"{n}_wr{it}:")
        a("s_or_b64 exec, exec, s[54:55]")
    a("s_endpgm")
    a(f"{n}_frag:")
    a(f"s_sub_u32 s48, s2, {NCH+1}")
    a("v_lshrrev_b32 v1, 7, v0")
    a("v_bfe_u32 v2, v0, 6, 1")
    a("v_and_b32 v3, 15, v0")
    a("v_bfe_u32 v4, v0, 4, 2")
    a("v_lshlrev_b32 v5, 3, v2")
    a("v_lshl_add_u32 v5, v4, 1, v5")
    a("v_cmp_gt_u32 vcc, 2, v1")
    a("v_subrev_u32 v6, 2, v1")
    a("s_nop 0\nv_cndmask_b32 v6, v6, v1, vcc")
    a("v_lshl_add_u32 v5, v6, 6, v5")
    a("s_lshl_b32 s49, s48, 4")
    a("v_add_u32 v3, s49, v3")
    a("v_lshlrev_b32 v3, 1, v3")
    a("v_lshl_add_u32 v7, v5, 7, v3")
    a("s_mov_b64 s[56:57], vcc")
    for which, sr in ((0, 28), (1, 32)):
        if which == 0:
            a("s_mov_b64 s[54:55], exec\ns_and_b64 exec, exec, s[56:57]")
        else:
            a("s_andn2_b64 exec, s[54:55], s[56:57]")
        a(f"s_cbranch_execz {n}_fr{which}")
        for i in range(8):
            off = (16 * (i & 3) + (i >> 2)) * 128
            if off < 4096:
                a(f"buffer_load_ushort v{10 + i}, v7, s[{sr}:{sr+3}], 0 offen offset:{off}")
            else:
                a(f"s_mov_b32 s50, {off}")
                a(f"buffer_load_ushort v{10 + i}, v7, s[{sr}:{sr+3}], s50 offen")
        a(f"{n}_fr{which}:")
    a("s_mov_b64 exec, s[54:55]")
    a("s_waitcnt vmcnt(0)")
    for k in range(4):
        a(f"v_lshl_or_b32 v{20+k}, v{11+2*k}, 16, v{10+2*k}")
    a("v_lshlrev_b32 v8, 4, v0")
    a(f"s_mul_i32 s50, s48, 10240\ns_add_u32 s50, s50, {WS_WFRAG}")
    a("buffer_store_dwordx4 v[20:23], v8, s[44:47], s50 offen")
    a(f"{n}_end:")
    a("s_endpgm")
    return a.text() + descriptor(K1_NAME, 104, 64)


K2_THREADS = 512
CAPROWS = 3072
MR_CAP = CAPROWS - 128
MASK = 0
CNT = MASK + 33 * 64
BST = CNT + 512
ENDS = BST + 512
WTOT = ENDS + 512
PARR = WTOT + 16
MVARR = PARR + 1024
COEF = 6144
RING = COEF + 16384
RECS = RING + 65536
K2_LDS = RECS + (CAPROWS + 64) * 16
assert MVARR + 1024 <= COEF
MARKS = RING
USTR = 2080

VU = 8
VACC = 88
VB0 = 120
VB1 = 136
VA = 152
VAM = 156
VM = 160
VW = 164
VADDR = 196
VVOFF = 200
VBADDR = 204
VAADDR = 208
VROW = 210
VRECADDR = 211
VCWADDR = 212
VSEGEND = 213
VMASKB = 214
VLANE = 215
VREC = 216
VH = 220
VFA = 224
VFY = 228
VP = 231
VT = 235
K2_VGPRS = 240

S_X = 4
S_WS = 8
S_OUT = 12
S_BKT = 16
S_WAVE = 17
S_GAM = 18
S_HB = 19
S_M = 20
S_R0 = 21
S_MR = 22
S_Q = 23
S_G = 24
S_LEN = 25
S_NW = 26
S_W = 27
S_WS0 = 28
S_END = 29
S_SEG = 30
S_IDX = 31
S_RING0 = 32
S_RING1 = 33
S_T0 = 34
S_FLAG = 48
S_WE = 49
S_BASE = 50
S_CARRY = 51
S_NR = 52
S_RECA = 53
S_RECB = 54
S_EXM = 56
S_SAVE = 68
S_HIMASK = 70
K2_SGPRS = 80


def coef_stage(a):
    R, H, FA, FY, P = VREC, VH, VFA, VFY, VP
    a(f"v_lshlrev_b32 v{FA}, 16, v{R}")
    a(f"v_and_b32 v{FA+1}, 0xffff0000, v{R}")
    a(f"v_lshlrev_b32 v{FA+2}, 16, v{R+1}")
    a(f"v_and_b32 v{FA+3}, 0xffff0000, v{R+1}")
    a(f"v_lshlrev_b32 v{FY}, 16, v{R+2}")
    a(f"v_and_b32 v{FY+1}, 0xffff0000, v{R+2}")
    a(f"v_lshlrev_b32 v{FY+2}, 16, v{R+3}")
    for j in range(3):
        for d in range(4):
            a(f"v_mul_f32 v{P+d}, v{FA+d}, v{FY+j}")
        d0 = R + 2 if j == 0 else H + 2 * (j - 1)
        a(f"v_cvt_pk_bf16_f32 v{d0}, v{P}, v{P+1}")
        a(f"v_cvt_pk_bf16_f32 v{d0+1}, v{P+2}, v{P+3}")
    a(f"ds_write_b128 v{VCWADDR}, v[{R}:{R+3}]")
    a(f"ds_write_b128 v{VCWADDR}, v[{H}:{H+3}] offset:128")


def row_from_rec(a):
    a(f"v_lshrrev_b32 v{VROW}, 7, v{VREC+3}")
    a(f"v_and_b32 v{VROW}, 0x1fffe00, v{VROW}")


def dma_addr(a, u):
    for q in range(4):
        j0 = 8 * u + 2 * q
        a(f"v_add_u32_dpp v{VADDR+q}, v{VROW}, v{VVOFF+q} row_newbcast:{j0} row_mask:0xf bank_mask:0x3")
        a(f"v_add_u32_dpp v{VADDR+q}, v{VROW}, v{VVOFF+q} row_newbcast:{j0+1} row_mask:0xf bank_mask:0xc")


def dma_slot(a, slot):
    a(f"s_mov_b32 m0, s{S_RING0 if slot == 0 else S_RING1}")
    a("s_nop 0")
    for q in range(4):
        a(f"buffer_load_dwordx4 v{VADDR+q}, s[{S_X}:{S_X+3}], 0 offen offset:{1024*q + 128*slot} lds")


def b_reads(a, slot):
    B = VB0 if slot == 0 else VB1
    for t in range(4):
        a(f"ds_read_b64_tr_b16 v[{B+4*t}:{B+4*t+1}], v{VBADDR+t} offset:{4096*slot}")
        a(f"ds_read_b64_tr_b16 v[{B+4*t+2}:{B+4*t+3}], v{VBADDR+t} offset:{4096*slot+2048}")


def mfma_block(a, bb, areg, fresh):
    B = VB0 if bb == 0 else VB1
    for t in range(4):
        acc = VACC + 16 * bb + 4 * t
        c = "0" if fresh else f"v[{acc}:{acc+3}]"
        a(f"v_mfma_f32_16x16x32_bf16 v[{acc}:{acc+3}], v[{areg}:{areg+3}], v[{B+4*t}:{B+4*t+3}], {c}")


def node_epilogue(a, NS):
    a(f"s_set_gpr_idx_on s{S_IDX}, gpr_idx(SRC2,DST)")
    a("s_nop 0")
    for bb in range(2):
        for d in range(4):
            for t in range(4):
                u = VU + 4 * bb + t
                a(f"v_fma_f32 v{u}, v{VW+16*bb+4*t+d}, v{VACC+16*bb+4*t+d}, v{u}")
    a("s_set_gpr_idx_off")
    a(f"s_add_u32 s{S_SEG}, s{S_SEG}, 1")
    a(f"s_add_u32 s{S_IDX}, s{S_IDX}, 8")
    a(f"s_cmp_eq_u32 s{S_IDX}, 80")
    a(f"s_cselect_b32 s{S_IDX}, 0, s{S_IDX}")
    a(f"v_readlane_b32 s{S_END}, v{VSEGEND}, s{S_SEG}")


def mask_read(a):
    a(f"s_sub_u32 s{S_T0}, s{S_END}, s{S_WS0}")
    a(f"s_min_u32 s{S_T0}, s{S_T0}, 32")
    a(f"s_lshl_b32 s{S_T0}, s{S_T0}, 6")
    a(f"v_add_u32 v{VT}, s{S_T0}, v{VMASKB}")
    a(f"ds_read_b128 v[{VM}:{VM+3}], v{VT}")


def split_a(a, src):
    for r in range(4):
        a(f"v_and_b32 v{VAM+r}, v{src+r}, v{VM+r}")
    for r in range(4):
        a(f"v_xor_b32 v{VA+r}, v{src+r}, v{VAM+r}")


def window(a, u, n):
    L = f"{n}_w{u}"
    a(f"{L}:")
    a("s_waitcnt vmcnt(4)")
    b_reads(a, 0)
    a(f"ds_read_b64_tr_b16 v[{VA}:{VA+1}], v{VAADDR} offset:{1024*u}")
    a(f"ds_read_b64_tr_b16 v[{VA+2}:{VA+3}], v{VAADDR+1} offset:{1024*u}")
    a(f"s_add_u32 s{S_WE}, s{S_WS0}, 32")
    mask_read(a)
    if u == 1:
        a(f"ds_read_b128 v[{VREC}:{VREC+3}], v{VRECADDR}")
        a(f"v_add_u32 v{VRECADDR}, 1024, v{VRECADDR}")
    else:
        dma_addr(a, 1)
    a(f"s_add_u32 s{S_W}, s{S_W}, 1")
    a("s_waitcnt lgkmcnt(0)")
    if u == 1:
        row_from_rec(a)
        a("s_nop 1")
        dma_addr(a, 0)
    a(f"s_cmp_ge_u32 s{S_W}, s{S_NW}")
    a(f"s_cbranch_scc1 {L}_last0")
    dma_slot(a, 0)
    a("s_waitcnt vmcnt(4)")
    a(f"s_branch {L}_c0")
    a(f"{L}_last0:")
    a("s_waitcnt vmcnt(0)")
    a(f"{L}_c0:")
    b_reads(a, 1)
    if u == 1:
        coef_stage(a)
    a(f"s_cmp_le_u32 s{S_END}, s{S_WE}")
    a(f"s_cbranch_scc1 {L}_bnd")
    mfma_block(a, 0, VA, False)
    a("s_waitcnt lgkmcnt(0)")
    a(f"s_cmp_ge_u32 s{S_W}, s{S_NW}")
    a(f"s_cbranch_scc1 {L}_nb_last")
    dma_slot(a, 1)
    a(f"{L}_nb_last:")
    mfma_block(a, 1, VA, False)
    a(f"s_branch {L}_done")
    a(f"{L}_bnd:")
    split_a(a, VA)
    a("s_nop 0")
    mfma_block(a, 0, VAM, False)
    a("s_waitcnt lgkmcnt(0)")
    a(f"s_cmp_ge_u32 s{S_W}, s{S_NW}")
    a(f"s_cbranch_scc1 {L}_b_last")
    dma_slot(a, 1)
    a(f"{L}_b_last:")
    mfma_block(a, 1, VAM, False)
    node_epilogue(a, None)
    a(f"{L}_more:")
    a(f"s_cmp_le_u32 s{S_END}, s{S_WE}")
    a(f"s_cbranch_scc0 {L}_rest")
    mask_read(a)
    a("s_waitcnt lgkmcnt(0)")
    split_a(a, VA)
    a("s_nop 0")
    mfma_block(a, 0, VAM, True)
    mfma_block(a, 1, VAM, True)
    node_epilogue(a, None)
    a(f"s_branch {L}_more")
    a(f"{L}_rest:")
    mfma_block(a, 0, VA, True)
    mfma_block(a, 1, VA, True)
    a(f"{L}_done:")
    a(f"s_mov_b32 s{S_WS0}, s{S_WE}")
    a(f"s_cmp_ge_u32 s{S_W}, s{S_NW}")
    a(f"s_cbranch_scc1 {n}_streamdone")


def gen_k2(cfg):
    NPH = cfg["NPH"]
    NS = 10 * NPH
    PF = cfg["PF"]
    a = Asm()
    n = "k2"
    a(f".globl {K2_NAME}\n.p2align 8\n.type {K2_NAME},@function\n{K2_NAME}:")
    a(f"s_cmp_ge_u32 s2, {NB}\ns_cbranch_scc1 {n}_end")
    a("s_load_dwordx2 s[36:37], s[0:1], 0")
    a("s_load_dwordx2 s[38:39], s[0:1], 72")
    a("s_load_dwordx2 s[40:41], s[0:1], 88")
    a(f"s_and_b32 s{S_T0}, s2, 7")
    a(f"s_lshr_b32 s{S_T0+1}, s2, 3")
    a(f"s_mul_i32 s{S_BKT}, s{S_T0}, 31")
    a(f"s_min_u32 s{S_T0}, s{S_T0}, 2")
    a(f"s_add_u32 s{S_BKT}, s{S_BKT}, s{S_T0}")
    a(f"s_add_u32 s{S_BKT}, s{S_BKT}, s{S_T0+1}")
    a(f"s_mov_b32 s{S_BASE}, s{S_T0+1}")
    a(f"v_lshrrev_b32 v1, 6, v0")
    a(f"v_and_b32 v{VLANE}, 63, v0")
    a(f"v_readfirstlane_b32 s{S_WAVE}, v1")
    a(f"s_lshr_b32 s{S_GAM}, s{S_WAVE}, 1")
    a(f"s_and_b32 s{S_HB}, s{S_WAVE}, 1")
    a("s_waitcnt lgkmcnt(0)")
    a(f"s_sub_u32 s{S_X}, s36, 4096\ns_subb_u32 s{S_X+1}, s37, 0")
    a(f"s_mov_b32 s{S_X+2}, {N*512+4096}\ns_mov_b32 s{S_X+3}, 0x20000")
    srd(a, S_WS, 40, 41, WS_SIZE)
    srd(a, S_OUT, 38, 39, N * 512)
    a("v_lshlrev_b32 v2, 10, v0")
    a(f"s_lshl_b32 s{S_T0}, s{S_BKT}, 2")
    a("v_mov_b32 v3, 0")
    a(f"v_cmp_gt_u32 vcc, {NCH}, v0")
    a(f"s_and_saveexec_b64 s[{S_SAVE}:{S_SAVE+1}], vcc")
    a(f"s_cbranch_execz {n}_notab")
    a(f"buffer_load_dword v3, v2, s[{S_WS}:{S_WS+3}], s{S_T0} offen offset:{WS_TAB}")
    a(f"{n}_notab:")
    a(f"s_mov_b64 exec, s[{S_SAVE}:{S_SAVE+1}]")
    a(f"v_lshlrev_b32 v4, 4, v{VLANE}")
    a(f"s_lshl_b32 s{S_T0}, s{S_HB}, 13\ns_add_u32 s{S_T0}, s{S_T0}, {WS_WRED}")
    for k in range(8):
        if k == 4:
            a(f"s_add_u32 s{S_T0}, s{S_T0}, 4096")
        a(f"buffer_load_dwordx4 v[{VW+4*k}:{VW+4*k+3}], v4, s[{S_WS}:{S_WS+3}], s{S_T0} offen offset:{1024*(k%4)}")
    a(f"s_mov_b32 s{S_RECA}, {WS_RECA}\ns_mov_b32 s{S_RECB}, {WS_RECB}")
    a(f"s_mov_b32 s{S_HIMASK}, 0\ns_mov_b32 s{S_HIMASK+1}, -1")
    for it in range(2):
        a(f"v_add_u32 v5, {512*it}, v0")
        if it == 1:
            a("v_cmp_gt_u32 vcc, 528, v5")
            a(f"s_and_saveexec_b64 s[{S_SAVE}:{S_SAVE+1}], vcc")
            a(f"s_cbranch_execz {n}_nomask")
        a("v_lshrrev_b32 v6, 4, v5")
        a("v_bfe_u32 v7, v5, 2, 2")
        a("v_bfe_u32 v96, v5, 1, 1")
        a("v_and_b32 v97, 1, v5")
        a("v_lshlrev_b32 v96, 4, v96")
        a("v_lshl_add_u32 v96, v7, 2, v96")
        a("v_lshl_add_u32 v96, v97, 1, v96")
        a("v_mov_b32 v98, 0\nv_mov_b32 v99, 0xffff\nv_mov_b32 v100, 0xffff0000")
        a("v_cmp_lt_u32 vcc, v96, v6\ns_nop 1\nv_cndmask_b32 v101, v98, v99, vcc")
        a("v_add_u32 v96, 1, v96")
        a("v_cmp_lt_u32 vcc, v96, v6\ns_nop 1\nv_cndmask_b32 v102, v98, v100, vcc")
        a("v_or_b32 v101, v101, v102")
        a(f"v_lshlrev_b32 v5, 2, v5\nv_add_u32 v5, {MASK}, v5")
        a("ds_write_b32 v5, v101")
        if it == 1:
            a(f"{n}_nomask:")
            a(f"s_mov_b64 exec, s[{S_SAVE}:{S_SAVE+1}]")
    lane = VLANE
    a(f"v_lshrrev_b32 v5, 3, v{lane}")
    a(f"v_and_b32 v6, 7, v{lane}")
    a("v_bfe_u32 v7, v5, 1, 2\nv_lshlrev_b32 v7, 1, v7\nv_xor_b32 v6, v6, v7\nv_lshlrev_b32 v6, 4, v6")
    a(f"s_lshl_b32 s{S_T0}, s{S_HB}, 8")
    for q in range(4):
        a(f"s_add_u32 s{S_T0+1}, s{S_T0}, {4096-1024*q}")
        a(f"v_add_u32 v{VVOFF+q}, s{S_T0+1}, v6")
    a(f"s_lshl_b32 s{S_RING0}, s{S_WAVE}, 13")
    if RING:
        a(f"s_add_u32 s{S_RING0}, s{S_RING0}, {RING}")
    a(f"s_add_u32 s{S_RING1}, s{S_RING0}, {4096-128}")
    a(f"v_lshrrev_b32 v5, 2, v{lane}")
    a(f"v_and_b32 v6, 3, v{lane}")
    a("v_bfe_u32 v7, v5, 1, 2")
    for t in range(4):
        a(f"v_xor_b32 v96, {t}, v7\nv_lshlrev_b32 v96, 5, v96")
        a("v_lshl_add_u32 v96, v5, 7, v96\nv_lshl_add_u32 v96, v6, 3, v96")
        a(f"v_add_u32 v{VBADDR+t}, s{S_RING0}, v96")
    a(f"s_lshl_b32 s{S_T0}, s{S_WAVE}, 11\ns_add_u32 s{S_T0}, s{S_T0}, {COEF}")
    a("v_and_b32 v97, 7, v5")
    a("v_lshrrev_b32 v98, 3, v5")
    a("v_lshrrev_b32 v99, 1, v6")
    a("v_and_b32 v100, 1, v6")
    for k in range(2):
        a(f"v_add_u32 v101, {2*k}, v98")
        a("v_lshlrev_b32 v102, 1, v101\nv_xor_b32 v102, v97, v102")
        a("v_lshl_add_u32 v102, v99, 3, v102\nv_lshlrev_b32 v102, 4, v102")
        a("v_lshl_add_u32 v102, v101, 8, v102\nv_lshl_add_u32 v102, v100, 3, v102")
        a(f"v_add_u32 v{VAADDR+k}, s{S_T0}, v102")
    a(f"v_lshrrev_b32 v5, 4, v{lane}")
    a(f"v_bfe_u32 v6, v{lane}, 3, 1")
    a(f"v_bfe_u32 v7, v{lane}, 1, 2")
    a(f"v_and_b32 v96, 1, v{lane}")
    a("v_lshl_add_u32 v97, v5, 1, v96")
    a("v_lshlrev_b32 v98, 1, v7\nv_xor_b32 v98, v97, v98\nv_lshlrev_b32 v98, 4, v98")
    a("v_lshl_add_u32 v98, v7, 8, v98\nv_lshl_add_u32 v98, v6, 10, v98")
    a(f"v_add_u32 v{VCWADDR}, s{S_T0}, v98")
    a("v_lshl_add_u32 v97, v7, 3, v97\nv_lshl_add_u32 v97, v6, 5, v97")
    a(f"v_lshlrev_b32 v2, 4, v97")
    a(f"v_lshrrev_b32 v5, 4, v{lane}\nv_lshlrev_b32 v5, 4, v5\nv_add_u32 v{VMASKB}, {MASK}, v5")
    a("s_waitcnt vmcnt(8)")
    a("v_lshrrev_b32 v4, 16, v3")
    a("v_and_b32 v3, 0xffff, v3")
    a("v_mov_b32 v5, v4")
    scan_add(a, 5)
    a("s_nop 0")
    a(f"v_readlane_b32 s{S_T0}, v5, 63")
    a(f"s_cmp_ge_u32 s{S_WAVE}, 4\ns_cbranch_scc1 {n}_nowtot")
    a(f"s_lshl_b32 s{S_T0+1}, s{S_WAVE}, 2\ns_add_u32 s{S_T0+1}, s{S_T0+1}, {WTOT}")
    a(f"v_mov_b32 v6, s{S_T0+1}\nv_mov_b32 v7, s{S_T0}")
    a("ds_write_b32 v6, v7")
    a(f"{n}_nowtot:")
    a(f"s_mov_b32 s{S_R0}, 0")
    a(f"{n}_round:")
    a("v_mov_b32 v96, 0\nv_mov_b32 v97, 0\nv_mov_b32 v98, 0\nv_mov_b32 v99, 0")
    a("v_lshlrev_b32 v6, 4, v0")
    a(f"ds_write_b128 v6, v[96:99] offset:{MARKS}")
    a("v_cmp_gt_u32 vcc, 256, v0")
    a(f"s_and_saveexec_b64 s[{S_SAVE}:{S_SAVE+1}], vcc")
    a(f"s_cbranch_execz {n}_z1")
    a(f"ds_write_b128 v6, v[96:99] offset:{MARKS+8192}")
    a(f"{n}_z1:")
    a(f"s_mov_b64 exec, s[{S_SAVE}:{S_SAVE+1}]")
    a("v_lshlrev_b32 v7, 2, v0")
    a("v_cmp_gt_u32 vcc, 128, v0")
    a(f"s_and_saveexec_b64 s[{S_SAVE}:{S_SAVE+1}], vcc")
    a(f"s_cbranch_execz {n}_z2")
    a(f"v_add_u32 v6, {CNT}, v7")
    a("ds_write_b32 v6, v96")
    a(f"{n}_z2:")
    a(f"s_mov_b64 exec, s[{S_SAVE}:{S_SAVE+1}]")
    a("s_waitcnt lgkmcnt(0)")
    a("s_barrier")
    a(f"s_cmp_lg_u32 s{S_R0}, 0\ns_cbranch_scc1 {n}_havep")
    a(f"v_mov_b32 v6, {WTOT}")
    a("ds_read_b128 v[96:99], v6")
    a("s_waitcnt lgkmcnt(0)")
    for k in range(4):
        a(f"v_readfirstlane_b32 s{S_T0+k}, v{96+k}")
    a(f"s_add_u32 s{S_T0+4}, s{S_T0}, s{S_T0+1}")
    a(f"s_add_u32 s{S_T0+5}, s{S_T0+4}, s{S_T0+2}")
    a(f"s_add_u32 s{S_M}, s{S_T0+5}, s{S_T0+3}")
    a(f"s_mov_b32 s{S_T0+6}, 0")
    a(f"s_cmp_eq_u32 s{S_WAVE}, 1\ns_cselect_b32 s{S_T0+6}, s{S_T0}, s{S_T0+6}")
    a(f"s_cmp_eq_u32 s{S_WAVE}, 2\ns_cselect_b32 s{S_T0+6}, s{S_T0+4}, s{S_T0+6}")
    a(f"s_cmp_eq_u32 s{S_WAVE}, 3\ns_cselect_b32 s{S_T0+6}, s{S_T0+5}, s{S_T0+6}")
    a(f"s_cmp_ge_u32 s{S_WAVE}, 4\ns_cbranch_scc1 {n}_havep")
    a("v_sub_u32 v5, v5, v4")
    a(f"v_add_u32 v5, s{S_T0+6}, v5")
    a(f"v_mul_u32_u24 v6, {CH}, v0")
    a("v_add_u32 v6, v6, v3\nv_sub_u32 v6, v6, v5")
    a("v_add_u32 v96, 1, v0\nv_lshl_or_b32 v6, v96, 20, v6")
    a("v_mov_b32 v97, 0\nv_mov_b32 v98, 0x7fffffff")
    a("v_cmp_lt_u32 vcc, 0, v4\ns_nop 1\nv_cndmask_b32 v6, v97, v6, vcc")
    a(f"v_cmp_gt_u32 vcc, {NCH}, v0\ns_nop 1\nv_cndmask_b32 v5, v98, v5, vcc")
    a(f"v_add_u32 v96, {PARR}, v7\nds_write_b32 v96, v5")
    a(f"v_add_u32 v96, {MVARR}, v7\nds_write_b32 v96, v6")
    a(f"{n}_havep:")
    a(f"s_sub_u32 s{S_MR}, s{S_M}, s{S_R0}")
    a(f"s_min_u32 s{S_MR}, s{S_MR}, {MR_CAP}")
    a(f"s_add_u32 s{S_Q}, s{S_MR}, 511\ns_lshr_b32 s{S_Q}, s{S_Q}, 9")
    a(f"s_mov_b32 s{S_NR}, s{S_Q}\ns_lshl_b32 s{S_Q}, s{S_Q}, 6")
    a(f"s_cmp_ge_u32 s{S_WAVE}, 4\ns_cbranch_scc1 {n}_nomark")
    a(f"v_add_u32 v96, {PARR}, v7\nds_read_b32 v5, v96")
    a(f"v_add_u32 v96, {MVARR}, v7\nds_read_b32 v6, v96")
    a("s_waitcnt lgkmcnt(0)")
    a(f"v_subrev_u32 v5, s{S_R0}, v5")
    a(f"v_cmp_gt_u32 vcc, s{S_MR}, v5")
    a(f"v_cmp_ne_u32 s[{S_T0}:{S_T0+1}], 0, v6")
    a(f"s_nop 0\ns_and_b64 vcc, vcc, s[{S_T0}:{S_T0+1}]")
    a(f"s_and_saveexec_b64 s[{S_SAVE}:{S_SAVE+1}], vcc")
    a(f"s_cbranch_execz {n}_nomark1")
    a(f"v_lshlrev_b32 v5, 2, v5\nds_write_b32 v5, v6 offset:{MARKS}")
    a(f"{n}_nomark1:")
    a(f"s_mov_b64 exec, s[{S_SAVE}:{S_SAVE+1}]")
    a(f"{n}_nomark:")
    a("s_waitcnt lgkmcnt(0)")
    a("s_barrier")
    REC0, BIN0, RNK0, MK0 = 120, 144, 150, 156
    a(f"s_mul_i32 s{S_T0+8}, s{S_WAVE}, s{S_Q}")
    a(f"s_add_u32 s{S_T0+9}, s{S_T0+8}, s{S_R0}")
    for r in range(6):
        a(f"s_mov_b64 s[{S_EXM+2*r}:{S_EXM+2*r+1}], 0")
    a(f"s_cmp_ge_u32 s{S_T0+8}, s{S_MR}\ns_cbranch_scc1 {n}_noload")
    a(f"v_lshlrev_b32 v6, 4, v{lane}")
    a(f"ds_read_b128 v[96:99], v6 offset:{PARR}")
    a(f"v_add_u32 v100, s{S_T0+8}, v{lane}")
    a("v_lshlrev_b32 v101, 2, v100")
    for r in range(6):
        a(f"ds_read_b32 v{MK0+r}, v101 offset:{MARKS+256*r}")
    a("s_waitcnt lgkmcnt(6)")
    a(f"s_mov_b32 s{S_T0}, 0")
    for k in range(4):
        a(f"v_cmp_ge_u32 vcc, s{S_T0+9}, v{96+k}")
        a(f"s_bcnt1_i32_b64 s{S_T0+1}, vcc")
        a(f"s_add_u32 s{S_T0}, s{S_T0}, s{S_T0+1}")
    a(f"s_sub_u32 s{S_T0}, s{S_T0}, 1\ns_lshl_b32 s{S_T0}, s{S_T0}, 2\ns_add_u32 s{S_T0}, s{S_T0}, {MVARR}")
    a(f"v_mov_b32 v102, s{S_T0}")
    a("ds_read_b32 v102, v102")
    a("s_waitcnt lgkmcnt(0)")
    a(f"v_readfirstlane_b32 s{S_CARRY}, v102")
    for sh in (1, 2, 4, 8):
        for r in range(6):
            a(f"v_max_u32_dpp v{MK0+r}, v{MK0+r}, v{MK0+r} row_shr:{sh} row_mask:0xf bank_mask:0xf bound_ctrl:1")
    for r in range(6):
        a(f"v_max_u32_dpp v{MK0+r}, v{MK0+r}, v{MK0+r} row_bcast:15 row_mask:0xa bank_mask:0xf")
    for r in range(6):
        a(f"v_max_u32_dpp v{MK0+r}, v{MK0+r}, v{MK0+r} row_bcast:31 row_mask:0xc bank_mask:0xf")
    for r in range(6):
        a(f"s_cmp_le_u32 s{S_NR}, {r}\ns_cbranch_scc1 {n}_loaded")
        a(f"v_max_u32 v{MK0+r}, s{S_CARRY}, v{MK0+r}")
        a("s_nop 0")
        a(f"v_readlane_b32 s{S_CARRY}, v{MK0+r}, 63")
        a(f"v_and_b32 v102, 0xfffff, v{MK0+r}")
        a(f"v_add_u32 v103, {64*r}, v100")
        a(f"v_cmp_gt_u32 s[{S_EXM+2*r}:{S_EXM+2*r+1}], s{S_MR}, v103")
        a(f"v_add_u32 v102, v102, v103")
        a(f"v_add_u32 v102, s{S_R0}, v102")
        a(f"s_mov_b64 exec, s[{S_EXM+2*r}:{S_EXM+2*r+1}]")
        a(f"s_cbranch_execz {n}_ld{r}")
        a("v_lshlrev_b32 v103, 4, v102")
        a(f"buffer_load_dwordx4 v[{REC0+4*r}:{REC0+4*r+3}], v103, s[{S_WS}:{S_WS+3}], s{S_RECA} offen")
        a(f"buffer_load_ubyte v{BIN0+r}, v102, s[{S_WS}:{S_WS+3}], s{S_RECB} offen")
        a(f"{n}_ld{r}:")
        a("s_mov_b64 exec, -1")
    a(f"{n}_loaded:")
    a(f"{n}_noload:")
    a(f"s_cmp_lg_u32 s{S_R0}, 0\ns_cbranch_scc1 {n}_nopf")
    if PF:
        a(f"s_mul_i32 s{S_T0}, s{S_BASE}, {8*PF*1024}")
        a(f"s_mul_i32 s{S_T0+1}, s{S_WAVE}, {PF*1024}")
        a(f"s_add_u32 s{S_T0}, s{S_T0}, s{S_T0+1}\ns_add_u32 s{S_T0}, s{S_T0}, 4096")
        a(f"v_lshlrev_b32 v6, 4, v{lane}")
        for k in range(PF):
            a(f"buffer_load_dwordx4 v[{VT+1}:{VT+4}], v6, s[{S_X}:{S_X+3}], s{S_T0} offen")
            a(f"s_add_u32 s{S_T0}, s{S_T0}, 1024")
    for r in range(80):
        a(f"v_mov_b32 v{VU+r}, 0")
    a(f"s_waitcnt vmcnt({PF})")
    a(f"s_branch {n}_pfdone")
    a(f"{n}_nopf:")
    a("s_waitcnt vmcnt(0)")
    a(f"{n}_pfdone:")
    a("v_mov_b32 v7, 1")
    for r in range(6):
        a(f"s_mov_b64 exec, s[{S_EXM+2*r}:{S_EXM+2*r+1}]")
        a(f"s_cbranch_execz {n}_rk{r}")
        a(f"v_lshlrev_b32 v{BIN0+r}, 2, v{BIN0+r}")
        a(f"ds_add_rtn_u32 v{RNK0+r}, v{BIN0+r}, v7 offset:{CNT}")
        a(f"{n}_rk{r}:")
    a("s_mov_b64 exec, -1")
    a("s_waitcnt lgkmcnt(0)")
    a("s_barrier")
    a(f"v_lshlrev_b32 v6, 2, v{lane}")
    a(f"ds_read_b32 v96, v6 offset:{CNT}")
    a(f"ds_read_b32 v97, v6 offset:{CNT+256}")
    a("s_waitcnt lgkmcnt(0)")
    a("v_mov_b32 v98, v96\nv_mov_b32 v99, v97")
    for sh in (1, 2, 4, 8):
        a("s_nop 0")
        for v in (98, 99):
            a(f"v_add_u32_dpp v{v}, v{v}, v{v} row_shr:{sh} row_mask:0xf bank_mask:0xf bound_ctrl:1")
    a("s_nop 0")
    for v in (98, 99):
        a(f"v_add_u32_dpp v{v}, v{v}, v{v} row_bcast:15 row_mask:0xa bank_mask:0xf")
    a("s_nop 0")
    a(f"v_readlane_b32 s{S_T0}, v98, 31\nv_readlane_b32 s{S_T0+1}, v98, 63")
    a(f"v_readlane_b32 s{S_T0+2}, v99, 31\nv_readlane_b32 s{S_T0+3}, v99, 63")
    a(f"s_add_u32 s{S_T0+4}, s{S_T0}, 31\ns_and_b32 s{S_T0+4}, s{S_T0+4}, -32")
    a(f"s_add_u32 s{S_T0+5}, s{S_T0+1}, 31\ns_and_b32 s{S_T0+5}, s{S_T0+5}, -32\ns_add_u32 s{S_T0+5}, s{S_T0+5}, s{S_T0+4}")
    a(f"s_add_u32 s{S_T0+6}, s{S_T0+2}, 31\ns_and_b32 s{S_T0+6}, s{S_T0+6}, -32\ns_add_u32 s{S_T0+6}, s{S_T0+6}, s{S_T0+5}")
    a("v_mov_b32 v100, 0")
    a(f"v_mov_b32 v101, s{S_T0+5}")
    a(f"s_mov_b64 exec, s[{S_HIMASK}:{S_HIMASK+1}]")
    a(f"v_mov_b32 v100, s{S_T0+4}")
    a(f"v_mov_b32 v101, s{S_T0+6}")
    a("s_mov_b64 exec, -1")
    a("v_sub_u32 v102, v98, v96\nv_add_u32 v102, v102, v100")
    a("v_sub_u32 v103, v99, v97\nv_add_u32 v103, v103, v101")
    a(f"ds_write_b32 v6, v102 offset:{BST}\nds_write_b32 v6, v103 offset:{BST+256}")
    a(f"ds_write_b32 v6, v98 offset:{ENDS}\nds_write_b32 v6, v99 offset:{ENDS+256}")
    a(f"s_mov_b32 s{S_G}, 0\ns_mov_b32 s{S_LEN}, s{S_T0}")
    for g in (1, 2, 3):
        a(f"s_cmp_eq_u32 s{S_GAM}, {g}")
        a(f"s_cselect_b32 s{S_G}, s{S_T0+3+g}, s{S_G}")
        a(f"s_cselect_b32 s{S_LEN}, s{S_T0+g}, s{S_LEN}")
    a(f"s_lshl_b32 s{S_T0+7}, s{S_GAM}, 7\ns_add_u32 s{S_T0+7}, s{S_T0+7}, {ENDS}")
    a(f"v_and_b32 v7, 31, v{lane}\nv_lshlrev_b32 v7, 2, v7\nv_add_u32 v7, s{S_T0+7}, v7")
    a(f"ds_read_b32 v{VSEGEND}, v7")
    for r in range(6):
        a(f"s_mov_b64 exec, s[{S_EXM+2*r}:{S_EXM+2*r+1}]")
        a(f"s_cbranch_execz {n}_bs{r}")
        a(f"ds_read_b32 v{MK0+r}, v{BIN0+r} offset:{BST}")
        a(f"{n}_bs{r}:")
    a("s_mov_b64 exec, -1")
    a("s_waitcnt lgkmcnt(0)")
    a(f"v_mov_b32 v7, 0x7fffffff")
    a(f"v_cmp_gt_u32 vcc, {NS}, v{lane}\ns_nop 1\nv_cndmask_b32 v{VSEGEND}, v7, v{VSEGEND}, vcc")
    for r in range(6):
        a(f"s_mov_b64 exec, s[{S_EXM+2*r}:{S_EXM+2*r+1}]")
        a(f"s_cbranch_execz {n}_pl{r}")
        a(f"v_add_u32 v{MK0+r}, v{MK0+r}, v{RNK0+r}")
        a(f"v_lshlrev_b32 v{MK0+r}, 4, v{MK0+r}")
        a(f"v_add_u32 v{MK0+r}, {RECS}, v{MK0+r}")
        a(f"ds_write_b128 v{MK0+r}, v[{REC0+4*r}:{REC0+4*r+3}]")
        a(f"{n}_pl{r}:")
    a("s_mov_b64 exec, -1")
    a(f"s_add_u32 s{S_NW}, s{S_LEN}, 31\ns_lshr_b32 s{S_NW}, s{S_NW}, 5")
    a(f"s_lshl_b32 s{S_T0}, s{S_NW}, 5")
    a(f"v_add_u32 v6, s{S_LEN}, v{lane}")
    a(f"v_cmp_gt_u32 vcc, s{S_T0}, v6")
    a(f"s_and_saveexec_b64 s[{S_SAVE}:{S_SAVE+1}], vcc")
    a(f"s_cbranch_execz {n}_nopad")
    a(f"v_add_u32 v6, s{S_G}, v6\nv_lshlrev_b32 v6, 4, v6\nv_add_u32 v6, {RECS}, v6")
    a("v_mov_b32 v96, 0\nv_mov_b32 v97, 0\nv_mov_b32 v98, 0\nv_mov_b32 v99, 0xffff0000")
    a("ds_write_b128 v6, v[96:99]")
    a(f"{n}_nopad:")
    a(f"s_mov_b64 exec, s[{S_SAVE}:{S_SAVE+1}]")
    a("s_waitcnt lgkmcnt(0)")
    a("s_barrier")
    a(f"s_cmp_eq_u32 s{S_NW}, 0\ns_cbranch_scc1 {n}_streamdone")
    a(f"s_lshl_b32 s{S_T0}, s{S_G}, 4\ns_add_u32 s{S_T0}, s{S_T0}, {RECS}")
    a(f"v_add_u32 v{VRECADDR}, s{S_T0}, v2")
    a(f"ds_read_b128 v[{VREC}:{VREC+3}], v{VRECADDR}")
    a(f"v_add_u32 v{VRECADDR}, 1024, v{VRECADDR}")
    for r in range(0, 32, 2):
        a(f"v_mov_b32 v{VACC+r}, 0\nv_mov_b32 v{VACC+r+1}, 0")
    a(f"s_mov_b32 s{S_W}, 0\ns_mov_b32 s{S_WS0}, 0\ns_mov_b32 s{S_SEG}, 0\ns_mov_b32 s{S_IDX}, 0")
    a(f"v_readlane_b32 s{S_END}, v{VSEGEND}, 0")
    a("s_waitcnt lgkmcnt(0)")
    row_from_rec(a)
    a("s_nop 1")
    dma_addr(a, 0)
    dma_slot(a, 0)
    dma_slot(a, 1)
    coef_stage(a)
    window(a, 0, n)
    window(a, 1, n)
    a(f"s_branch {n}_w0")
    a(f"{n}_streamdone:")
    a(f"s_add_u32 s{S_R0}, s{S_R0}, {MR_CAP}")
    a(f"s_cmp_ge_u32 s{S_R0}, s{S_M}\ns_cbranch_scc1 {n}_final")
    a("s_waitcnt vmcnt(0) lgkmcnt(0)")
    a("s_barrier")
    a(f"s_branch {n}_round")

    a(f"{n}_final:")
    WF = 120
    a(f"s_and_b32 s{S_T0}, s{S_WAVE}, 3")
    a(f"s_mul_i32 s{S_T0+1}, s{S_T0}, 10240\ns_add_u32 s{S_T0+1}, s{S_T0+1}, {WS_WFRAG}")
    a(f"v_lshlrev_b32 v4, 4, v{lane}")
    a("s_waitcnt vmcnt(0) lgkmcnt(0)")
    for k in range(10):
        if k and k % 4 == 0:
            a(f"s_add_u32 s{S_T0+1}, s{S_T0+1}, 4096")
        a(f"buffer_load_dwordx4 v[{WF+4*k}:{WF+4*k+3}], v4, s[{S_WS}:{S_WS+3}], s{S_T0+1} offen offset:{1024*(k%4)}")
    for i in range(10):
        for bb in range(2):
            u = VU + 8 * i + 4 * bb
            a(f"v_cvt_pk_bf16_f32 v{u}, v{u}, v{u+1}")
            a(f"v_cvt_pk_bf16_f32 v{u+1}, v{u+2}, v{u+3}")
    a("s_barrier")
    a(f"s_lshl_b32 s{S_T0+2}, s{S_HB}, 10")
    a(f"s_mul_i32 s{S_T0+3}, s{S_GAM}, {USTR}\ns_add_u32 s{S_T0+2}, s{S_T0+2}, s{S_T0+3}")
    a(f"v_lshlrev_b32 v5, 3, v{lane}\nv_add_u32 v5, s{S_T0+2}, v5")
    for i in range(10):
        u = VU + 8 * i
        a(f"ds_write2st64_b64 v5, v[{u}:{u+1}], v[{u+4}:{u+5}] offset0:0 offset1:1")
        if i < 9:
            a(f"v_add_u32 v5, {4*USTR}, v5")
    a("s_waitcnt lgkmcnt(0)")
    a("s_barrier")
    a(f"v_and_b32 v5, 15, v{lane}\nv_lshrrev_b32 v6, 4, v{lane}")
    a(f"v_mul_u32_u24 v7, {USTR}, v5\nv_lshl_add_u32 v7, v6, 4, v7")
    a(f"s_mul_i32 s{S_T0+4}, s{S_BKT}, {BN*512}\ns_lshl_b32 s{S_T0+5}, s{S_T0}, 5\ns_add_u32 s{S_T0+4}, s{S_T0+4}, s{S_T0+5}")
    a(f"v_lshlrev_b32 v36, 9, v5\nv_lshl_add_u32 v36, v6, 3, v36\nv_add_u32 v36, s{S_T0+4}, v36")
    a(f"s_lshr_b32 s{S_T0+6}, s{S_WAVE}, 2")
    blocks = {
        0: [((0, 0), 0), ((1, 1), 1), ((2, 2), 1), ((3, 3), 1)],
        1: [((0, 1), 2), ((1, 0), 3), ((3, 2), 4), ((2, 3), 4)],
        2: [((0, 2), 2), ((2, 0), 3), ((1, 3), 4), ((3, 1), 4)],
        3: [((0, 3), 2), ((3, 0), 3), ((2, 1), 4), ((1, 2), 4)],
    }
    UF = 164
    D = 88

    def gemm_out(o, vbase):
        k = 0
        for ((beta, g), s) in blocks[o]:
            for h2 in range(2):
                a(f"ds_read_b128 v[{UF+4*k}:{UF+4*k+3}], v{vbase} offset:{(beta*4+g)*128 + h2*64}")
                k += 1
        k = 0
        for ((beta, g), s) in blocks[o]:
            for h2 in range(2):
                a(f"s_waitcnt lgkmcnt({7-k})")
                c = "0" if k == 0 else f"v[{D+4*o}:{D+4*o+3}]"
                a(f"v_mfma_f32_16x16x32_bf16 v[{D+4*o}:{D+4*o+3}], v[{WF+8*s+4*h2}:{WF+8*s+4*h2+3}], v[{UF+4*k}:{UF+4*k+3}], {c}")
                k += 1

    def finish(outs, voffs, store0):
        a("s_nop 7")
        G = 104
        for r in range(4):
            a(f"v_mul_f32 v{G+r}, 0xbfb8aa3b, v{D+r}")
        for r in range(4):
            a(f"v_exp_f32 v{G+r}, v{G+r}")
        a("s_nop 0")
        for r in range(4):
            a(f"v_add_f32 v{G+r}, 1.0, v{G+r}")
        for r in range(4):
            a(f"v_rcp_f32 v{G+r}, v{G+r}")
        a("s_nop 0")
        if store0:
            a(f"v_cvt_pk_bf16_f32 v108, v{D}, v{D+1}\nv_cvt_pk_bf16_f32 v109, v{D+2}, v{D+3}")
            a(f"buffer_store_dwordx2 v[108:109], v{voffs}, s[{S_OUT}:{S_OUT+3}], 0 offen")
        for o in outs:
            for r in range(4):
                a(f"v_mul_f32 v{D+4*o+r}, v{D+4*o+r}, v{G+r}")
            e = 110 + 2 * (o - 1)
            a(f"v_cvt_pk_bf16_f32 v{e}, v{D+4*o}, v{D+4*o+1}\nv_cvt_pk_bf16_f32 v{e+1}, v{D+4*o+2}, v{D+4*o+3}")
            a(f"buffer_store_dwordx2 v[{e}:{e+1}], v{voffs}, s[{S_OUT}:{S_OUT+3}], 0 offen offset:{128*o}")

    a(f"s_mul_i32 s{S_T0+7}, s{S_T0+6}, {16*USTR}")
    a(f"v_add_u32 v37, s{S_T0+7}, v7")
    a(f"s_lshl_b32 s{S_T0+7}, s{S_T0+6}, 13")
    a(f"v_add_u32 v38, s{S_T0+7}, v36")
    a("s_waitcnt vmcnt(0)")
    for o in range(4):
        gemm_out(o, 37)
    finish([1, 2, 3], 38, True)
    a(f"v_add_u32 v37, {32*USTR}, v7")
    a(f"v_add_u32 v38, {32*512}, v36")
    a(f"s_cmp_lg_u32 s{S_T0+6}, 0\ns_cbranch_scc1 {n}_t2b")
    gemm_out(0, 37)
    gemm_out(1, 37)
    a("v_cmp_gt_u32 vcc, 8, v5")
    a(f"s_and_saveexec_b64 s[{S_SAVE}:{S_SAVE+1}], vcc")
    finish([1], 38, True)
    a("s_endpgm")
    a(f"{n}_t2b:")
    gemm_out(0, 37)
    gemm_out(2, 37)
    gemm_out(3, 37)
    a("v_cmp_gt_u32 vcc, 8, v5")
    a(f"s_and_saveexec_b64 s[{S_SAVE}:{S_SAVE+1}], vcc")
    finish([2, 3], 38, False)
    a(f"{n}_end:")
    a("s_endpgm")
    return a.text() + descriptor(K2_NAME, K2_VGPRS, K2_SGPRS)


HEADER = open("gather_scatter__tensor_product_equiv_equiformer__graph.s.ref").read().split("; Override launch")[0]


def build(cfg, only=None):
    lines = [HEADER.rstrip("\n")]
    lines.append(f"; @launch kernel={K1_NAME} grid=(255,1,1) block=({K1_THREADS},1,1) lds={K1_LDS}")
    lines.append(f"; @launch kernel={K2_NAME} grid=({NB},1,1) block=({K2_THREADS},1,1) lds={K2_LDS}")
    s = "\n".join(lines) + '\n.amdgcn_target "amdgcn-amd-amdhsa--gfx950"\n.text\n'
    s += gen_k1(cfg) + gen_k2(cfg)
    return s


if __name__ == "__main__":
    cfg = dict(NPH=1, PF=12)
    for arg in sys.argv[2:]:
        k, v = arg.split("=")
        cfg[k] = int(v)
    out = sys.argv[1] if len(sys.argv) > 1 else "k.s"
    open(out, "w").write(build(cfg))
    print("wrote", out, cfg, "K2 lds", K2_LDS)
```

```python
import sys

N = 10000
E = 640000
NCH = 250
CH = 2560
NB = 250
BN = 40

WS_TAB = 0x0
WS_WRED = 0x40000
WS_WFRAG = 0x44000
WS_RECB = 0x50000
WS_RECA = 0x100000
WS_SIZE = WS_RECA + E * 16

K1_NAME = "gs_part_kernel"
K2_NAME = "gather_scatter__tensor_product_equiv_equiformer__graph_kernel"


class Asm:
    def __init__(self):
        self.L = []

    def __call__(self, s):
        for line in s.split("\n"):
            line = line.strip()
            if not line:
                continue
            if line.endswith(":"):
                self.L.append(line)
            else:
                self.L.append("  " + line)

    def text(self):
        return "\n".join(self.L) + "\n"


def srd(a, s, base_lo, base_hi, size):
    a(f"s_mov_b32 s{s}, s{base_lo}")
    a(f"s_mov_b32 s{s+1}, s{base_hi}")
    a(f"s_mov_b32 s{s+2}, {size}")
    a(f"s_mov_b32 s{s+3}, 0x20000")


def scan_add(a, v, full=True):
    for sh in (1, 2, 4, 8):
        a("s_nop 1")
        a(f"v_add_u32_dpp v{v}, v{v}, v{v} row_shr:{sh} row_mask:0xf bank_mask:0xf bound_ctrl:1")
    if full is False:
        return
    a("s_nop 1")
    a(f"v_add_u32_dpp v{v}, v{v}, v{v} row_bcast:15 row_mask:0xa bank_mask:0xf")
    if full == "half":
        return
    a("s_nop 1")
    a(f"v_add_u32_dpp v{v}, v{v}, v{v} row_bcast:31 row_mask:0xc bank_mask:0xf")


WS_TS = 0x2000000
TS_ON = False
ABL = {}


TSV = [99]


def stamp(a, k):
    if TS_ON:
        a(f"s_memrealtime s[98:99]\ns_waitcnt lgkmcnt(0)\nv_writelane_b32 v{TSV[0]}, s98, {k}")


def stamp_flush(a, nst, ws_lo, ws_hi, wave_s, kern, tmpv):
    if not TS_ON:
        return
    a("s_mov_b64 exec, 0xffff")
    a(f"s_mov_b32 s100, s{ws_lo}\ns_mov_b32 s101, s{ws_hi}")
    a(f"s_add_u32 s100, s100, {WS_TS + kern*0x100000}\ns_addc_u32 s101, s101, 0")
    a(f"s_lshl_b32 s97, s2, 4\ns_add_u32 s97, s97, s{wave_s}\ns_lshl_b32 s97, s97, 6")
    a(f"s_add_u32 s100, s100, s97\ns_addc_u32 s101, s101, 0")
    a(f"v_and_b32 v{tmpv}, 63, v0\nv_lshlrev_b32 v{tmpv}, 2, v{tmpv}")
    a(f"global_store_dword v{tmpv}, v{TSV[0]}, s[100:101]")
    a("s_waitcnt vmcnt(0)")


def descriptor(name, vgpr, sgpr):
    if TS_ON:
        sgpr = 102
    return f""".section .rodata,"a"
.p2align 6
.amdhsa_kernel {name}
  .amdhsa_next_free_vgpr {vgpr}
  .amdhsa_next_free_sgpr {sgpr}
  .amdhsa_accum_offset {(vgpr + 3) // 4 * 4}
  .amdhsa_group_segment_fixed_size 0
  .amdhsa_kernarg_size 96
  .amdhsa_user_sgpr_count 2
  .amdhsa_user_sgpr_kernarg_segment_ptr 1
  .amdhsa_system_sgpr_workgroup_id_x 1
.end_amdhsa_kernel
.text
"""


K1_THREADS = 640
K1_CNT = 0
K1_START = 1024
K1_RB = 2048
K1_RA = 4608
K1_LDS = K1_RA + CH * 16


def gen_k1(cfg):
    NPH = cfg["NPH"]
    TSV[0] = 99
    a = Asm()
    n = "k1"
    a(f".globl {K1_NAME}\n.p2align 8\n.type {K1_NAME},@function\n{K1_NAME}:")
    a(f"s_cmp_ge_u32 s2, 255\ns_cbranch_scc1 {n}_end")
    a("s_load_dwordx4 s[4:7], s[0:1], 0")
    a("s_load_dwordx4 s[8:11], s[0:1], 16")
    a("s_load_dwordx4 s[12:15], s[0:1], 32")
    a("s_load_dwordx4 s[16:19], s[0:1], 48")
    a("s_load_dwordx2 s[20:21], s[0:1], 88")
    a(f"s_cmp_ge_u32 s2, {NCH}\ns_cbranch_scc1 {n}_prep")
    stamp(a, 0)
    a("v_lshlrev_b32 v1, 3, v0")
    a("v_lshlrev_b32 v2, 4, v0")
    a("v_mul_u32_u24 v3, 12, v0")
    a("v_lshlrev_b32 v4, 5, v0")
    a("v_lshlrev_b32 v5, 2, v0")
    a(f"s_mul_i32 s48, s2, {CH*4}")
    a(f"s_add_u32 s49, s48, {CH*2}")
    a(f"s_mul_i32 s50, s2, {CH*8}")
    a(f"s_add_u32 s51, s50, {CH*4}")
    a(f"s_mul_i32 s52, s2, {CH*6}")
    a(f"s_add_u32 s53, s52, {CH*3}")
    a("v_mov_b32 v6, 0")
    a("v_cmp_gt_u32 vcc, 256, v0")
    a("s_and_saveexec_b64 s[54:55], vcc")
    a(f"s_cbranch_execz {n}_z")
    a(f"ds_write_b32 v5, v6 offset:{K1_CNT}")
    a(f"{n}_z:")
    a("s_or_b64 exec, exec, s[54:55]")
    a("s_waitcnt lgkmcnt(0)")
    srd(a, 24, 4, 5, N * 512)
    srd(a, 28, 6, 7, E * 6)
    srd(a, 32, 8, 9, E * 8)
    srd(a, 36, 10, 11, E * 4)
    srd(a, 40, 12, 13, E * 4)
    srd(a, 44, 20, 21, WS_SIZE)
    K1V = cfg.get("K1V", 0)
    ld_dst = ["buffer_load_dwordx2 v[10:11], v1, s[40:43], s48 offen",
              "buffer_load_dwordx2 v[12:13], v1, s[40:43], s49 offen"]
    ld_src = ["buffer_load_dwordx2 v[14:15], v1, s[36:39], s48 offen",
              "buffer_load_dwordx2 v[16:17], v1, s[36:39], s49 offen"]
    ld_pay = ["buffer_load_dwordx4 v[20:23], v2, s[32:35], s50 offen",
              "buffer_load_dwordx4 v[24:27], v2, s[32:35], s51 offen",
              "buffer_load_dwordx3 v[28:30], v3, s[28:31], s52 offen",
              "buffer_load_dwordx3 v[32:34], v3, s[28:31], s53 offen"]
    ld_x = ["buffer_load_dwordx4 v[36:39], v4, s[24:27], s50 offen",
            "buffer_load_dwordx4 v[40:43], v4, s[24:27], s50 offen offset:16"]
    XP = cfg.get("XP", 1)
    if K1V == 0:
        for l in ld_dst + ld_src + ld_pay + (ld_x if XP == 1 else []):
            a(l)
        a("s_barrier")
        a("v_mov_b32 v7, 1")
        a(f"s_waitcnt vmcnt({6 if XP == 1 else 4})")
    else:
        for l in ld_dst + ld_src:
            a(l)
        a("s_barrier")
        for l in ld_pay + (ld_x if XP == 1 else []):
            a(l)
        a("v_mov_b32 v7, 1")
        a(f"s_waitcnt vmcnt({6 if XP == 1 else 4})")
    stamp(a, 1)
    for j in range(4):
        d, s, bk, bn = 10 + j, 14 + j, 44 + j, 48 + j
        a(f"v_mul_u32_u24 v{bk}, 0xcccd, v{d}")
        a(f"v_lshrrev_b32 v{bk}, 21, v{bk}")
        a(f"v_mul_u32_u24 v8, 40, v{bk}")
        a(f"v_sub_u32 v8, v{d}, v8")
        a(f"v_and_b32 v9, 3, v8")
        a(f"v_lshrrev_b32 v8, 2, v8")
        a(f"v_lshl_add_u32 v{bn}, v9, {3 + NPH}, v8")
        if NPH == 2:
            a(f"v_cmp_le_u32 vcc, {N//2}, v{s}")
            a(f"v_add_u32 v9, 10, v{bn}")
            a("s_nop 0")
            a(f"v_cndmask_b32 v{bn}, v{bn}, v9, vcc")
        a(f"v_lshlrev_b32 v{bk}, 2, v{bk}")
        a(f"ds_add_rtn_u32 v{52+j}, v{bk}, v7 offset:{K1_CNT}")
    a("s_waitcnt lgkmcnt(0)")
    a("s_barrier")
    stamp(a, 2)
    a("v_and_b32 v56, 63, v0")
    a("v_lshlrev_b32 v57, 4, v56")
    a(f"ds_read_b128 v[60:63], v57 offset:{K1_CNT}")
    a("s_waitcnt lgkmcnt(0)")
    a("v_add_u32 v58, v60, v61")
    a("v_add_u32 v59, v62, v63")
    a("v_add_u32 v58, v58, v59")
    a("v_mov_b32 v59, v58")
    scan_add(a, 59)
    a("v_sub_u32 v64, v59, v58")
    a("v_add_u32 v65, v64, v60")
    a("v_add_u32 v66, v65, v61")
    a("v_add_u32 v67, v66, v62")
    a(f"ds_write_b128 v57, v[64:67] offset:{K1_START}")
    a("v_lshrrev_b32 v8, 6, v0")
    a("s_nop 0")
    a("v_readfirstlane_b32 s56, v8")
    a("s_lshl_b32 s57, s2, 10")
    a(f"s_cmp_lg_u32 s56, 0\ns_cbranch_scc1 {n}_notab")
    for k in range(4):
        a(f"v_lshl_or_b32 v{68+k}, v{60+k}, 16, v{64+k}")
    a(f"buffer_store_dwordx4 v[68:71], v57, s[44:47], s57 offen offset:{WS_TAB}")
    a(f"{n}_notab:")
    a("s_waitcnt lgkmcnt(0)")
    for j in range(4):
        a(f"ds_read_b32 v{72+j}, v{44+j} offset:{K1_START}")
    a("s_waitcnt lgkmcnt(0)")
    for j in range(4):
        a(f"v_add_u32 v{72+j}, v{72+j}, v{52+j}")
    for j in range(4):
        a(f"v_add_u32 v8, {K1_RB}, v{72+j}")
        a(f"ds_write_b8 v8, v{48+j}")
        a(f"v_lshlrev_b32 v{72+j}, 4, v{72+j}")
        a(f"v_add_u32 v{72+j}, {K1_RA}, v{72+j}")
    stamp(a, 3)
    a(f"s_waitcnt vmcnt({2 if XP == 1 else 0})")
    stamp(a, 4)
    if XP == 2:
        for l in ld_x:
            a(l)
    for r in range(2):
        ea, rh, sj = 20 + 4 * r, 28 + 4 * r, 14 + 2 * r
        a(f"v_alignbit_b32 v{76+2*r}, v{rh+2}, v{rh+1}, 16")
        a(f"v_alignbit_b32 v{77+2*r}, v{sj+1}, v{rh+2}, 16")
        a(f"v_and_b32 v{rh+1}, 0xffff, v{rh+1}")
        a(f"v_lshl_or_b32 v{rh+1}, v{sj}, 16, v{rh+1}")
        a(f"ds_write2_b64 v{72+2*r}, v[{ea}:{ea+1}], v[{rh}:{rh+1}] offset0:0 offset1:1")
        a(f"ds_write2_b64 v{73+2*r}, v[{ea+2}:{ea+3}], v[{76+2*r}:{77+2*r}] offset0:0 offset1:1")
    a("s_waitcnt lgkmcnt(0)")
    a("s_barrier")
    stamp(a, 5)
    STF = {0: "", 1: "sc1", 2: "nt", 3: "sc0 sc1"}[cfg.get("STF", 0)]
    for k in range(4):
        a(f"ds_read_b128 v[{80+4*k}:{83+4*k}], v2 offset:{K1_RA + k*K1_THREADS*16}")
    a(f"ds_read_b32 v96, v5 offset:{K1_RB}")
    a(f"s_mul_i32 s58, s2, {CH*16}\ns_add_u32 s58, s58, {WS_RECA}")
    a(f"s_mul_i32 s59, s2, {CH}\ns_add_u32 s59, s59, {WS_RECB}")
    for k in range(4):
        a(f"s_waitcnt lgkmcnt({4-k})")
        a(f"buffer_store_dwordx4 v[{80+4*k}:{83+4*k}], v2, s[44:47], s58 offen {STF}")
        if k < 3:
            a(f"s_add_u32 s58, s58, {K1_THREADS*16}")
    a("s_waitcnt lgkmcnt(0)")
    a(f"buffer_store_dword v96, v5, s[44:47], s59 offen {STF}")
    stamp(a, 6)
    if TS_ON:
        a("s_waitcnt vmcnt(0)")
    stamp(a, 7)
    stamp_flush(a, 8, 20, 21, 56, 0, 98)
    a("s_endpgm")

    a(f"{n}_prep:")
    a("s_waitcnt lgkmcnt(0)")
    srd(a, 24, 14, 15, 4 * 320 * 2)
    srd(a, 28, 16, 17, 128 * 64 * 2)
    srd(a, 32, 18, 19, 192 * 64 * 2)
    srd(a, 44, 20, 21, WS_SIZE)
    a(f"s_cmp_lg_u32 s2, {NCH}\ns_cbranch_scc1 {n}_frag")
    a("v_mov_b32 v1, 0\nv_lshlrev_b32 v2, 2, v0")
    a(f"s_mov_b32 s58, {WS_TAB + NCH*1024}")
    a("buffer_store_dword v1, v2, s[44:47], s58 offen")
    a("buffer_store_dword v1, v2, s[44:47], s58 offen offset:2560")
    a("v_cmp_gt_u32 vcc, 256, v0")
    a("s_and_saveexec_b64 s[54:55], vcc")
    a(f"s_cbranch_execz {n}_zt")
    a(f"s_add_u32 s58, s58, 5120")
    a("buffer_store_dword v1, v2, s[44:47], s58 offen")
    a(f"{n}_zt:")
    a("s_or_b64 exec, exec, s[54:55]")
    for it in range(7):
        a(f"v_add_u32 v1, {it*K1_THREADS}, v0")
        a("v_cmp_gt_u32 vcc, 4096, v1")
        a("s_and_saveexec_b64 s[54:55], vcc")
        a(f"s_cbranch_execz {n}_wr{it}")
        a("v_lshrrev_b32 v2, 10, v1")
        a("v_bfe_u32 v3, v1, 8, 2")
        a("v_bfe_u32 v4, v1, 2, 4")
        a("v_bfe_u32 v5, v1, 6, 2")
        a("v_and_b32 v6, 3, v1")
        a("v_lshl_add_u32 v7, v3, 4, v4")
        a("v_mov_b32 v8, 4")
        a("v_cmp_eq_u32 vcc, v5, v2\ns_nop 1\nv_cndmask_b32 v8, v8, 1, vcc")
        a("v_cmp_eq_u32 vcc, 0, v5\ns_nop 1\nv_cndmask_b32 v8, v8, 3, vcc")
        a("v_mov_b32 v9, 2")
        a("v_cmp_eq_u32 vcc, 0, v5\ns_nop 1\nv_cndmask_b32 v9, v9, 0, vcc")
        a("v_cmp_eq_u32 vcc, 0, v2\ns_nop 1\nv_cndmask_b32 v8, v8, v9, vcc")
        a("v_mul_u32_u24 v10, 320, v6")
        a("v_lshl_add_u32 v10, v8, 6, v10")
        a("v_add_u32 v10, v10, v7")
        a("v_lshlrev_b32 v10, 1, v10")
        a("buffer_load_ushort v11, v10, s[24:27], 0 offen")
        a("v_subrev_u32 v12, 1, v2")
        a("v_mov_b32 v13, v5")
        a("v_cmp_eq_u32 vcc, 3, v5\ns_nop 1\nv_cndmask_b32 v13, v13, 0, vcc")
        a("v_cmp_ne_u32 vcc, v12, v13")
        a("v_cmp_eq_u32 s[56:57], 4, v8")
        a("s_nop 1\ns_and_b64 vcc, vcc, s[56:57]")
        a("v_mov_b32 v14, 0\nv_mov_b32 v15, 0x80000000")
        a("s_nop 1\nv_cndmask_b32 v14, v14, v15, vcc")
        a("s_waitcnt vmcnt(0)")
        a("v_lshlrev_b32 v11, 16, v11")
        a("v_xor_b32 v11, v11, v14")
        a("v_lshlrev_b32 v1, 2, v1")
        a(f"s_mov_b32 s58, {WS_WRED}")
        a("buffer_store_dword v11, v1, s[44:47], s58 offen")
        a(f"{n}_wr{it}:")
        a("s_or_b64 exec, exec, s[54:55]")
    a("s_endpgm")
    a(f"{n}_frag:")
    a(f"s_sub_u32 s48, s2, {NCH+1}")
    a("v_lshrrev_b32 v1, 7, v0")
    a("v_bfe_u32 v2, v0, 6, 1")
    a("v_and_b32 v3, 15, v0")
    a("v_bfe_u32 v4, v0, 4, 2")
    a("v_lshlrev_b32 v5, 3, v2")
    a("v_lshl_add_u32 v5, v4, 1, v5")
    a("v_cmp_gt_u32 vcc, 2, v1")
    a("v_subrev_u32 v6, 2, v1")
    a("s_nop 0\nv_cndmask_b32 v6, v6, v1, vcc")
    a("v_lshl_add_u32 v5, v6, 6, v5")
    a("s_lshl_b32 s49, s48, 4")
    a("v_add_u32 v3, s49, v3")
    a("v_lshlrev_b32 v3, 1, v3")
    a("v_lshl_add_u32 v7, v5, 7, v3")
    a("s_mov_b64 s[56:57], vcc")
    for which, sr in ((0, 28), (1, 32)):
        if which == 0:
            a("s_mov_b64 s[54:55], exec\ns_and_b64 exec, exec, s[56:57]")
        else:
            a("s_andn2_b64 exec, s[54:55], s[56:57]")
        a(f"s_cbranch_execz {n}_fr{which}")
        for i in range(8):
            off = (16 * (i & 3) + (i >> 2)) * 128
            if off < 4096:
                a(f"buffer_load_ushort v{10 + i}, v7, s[{sr}:{sr+3}], 0 offen offset:{off}")
            else:
                a(f"s_mov_b32 s50, {off}")
                a(f"buffer_load_ushort v{10 + i}, v7, s[{sr}:{sr+3}], s50 offen")
        a(f"{n}_fr{which}:")
    a("s_mov_b64 exec, s[54:55]")
    a("s_waitcnt vmcnt(0)")
    for k in range(4):
        a(f"v_lshl_or_b32 v{20+k}, v{11+2*k}, 16, v{10+2*k}")
    a("v_lshlrev_b32 v8, 4, v0")
    a(f"s_mul_i32 s50, s48, 10240\ns_add_u32 s50, s50, {WS_WFRAG}")
    a("buffer_store_dwordx4 v[20:23], v8, s[44:47], s50 offen")
    a(f"{n}_end:")
    a("s_endpgm")
    return a.text() + descriptor(K1_NAME, 104, 64)


K2_THREADS = 512
CAPROWS = 3072
MR_CAP = CAPROWS - 128
MASK = 0
CNT = MASK + 33 * 64
FLAG = CNT + 512
BST = FLAG + 16
WTOT = BST + 512
PARR = WTOT + 16
MVARR = PARR + 1024
RECS = 5888
COEF = RECS + (CAPROWS + 64) * 16
RING = COEF + 16384
K2_LDS = RING + 65536
assert MVARR + 1024 <= RECS and RECS % 256 == 0 and COEF % 256 == 0
MARKS = RECS
USTR = 2080

VU = 8
VACC = 88
VB0 = 120
VB1 = 136
VA = 152
VAM = 156
VM = 160
VW = 164
VADDR = 196
VVOFF = 200
VBADDR = 204
VAADDR = 208
VROW = 210
VRECADDR = 211
VCWADDR = 212
VSEGEND = 213
VMASKB = 214
VLANE = 215
VREC = 216
VH = 220
VFA = 224
VFY = 228
VP = 231
VT = 235
K2_VGPRS = 256
def REC(k): return 88 + 4 * k
def BIN(k): return 152 + k if k < 12 else 216 + k - 12
def RNK(k): return 220 + k
def TAB(k): return 236 + k
T0, T1, T2, T3, T4, T5, T6, T7 = 244, 245, 246, 247, 248, 249, 250, 251

S_X = 4
S_WS = 8
S_OUT = 12
S_BKT = 16
S_WAVE = 17
S_GAM = 18
S_HB = 19
S_M = 20
S_R0 = 21
S_MR = 22
S_Q = 23
S_G = 24
S_LEN = 25
S_NW = 26
S_RANK = 27
S_WS0 = 28
S_END = 29
S_SEG = 30
S_IDX = 31
S_RING0 = 32
S_RING1 = 33
S_T0 = 34
S_WE = 48
S_SEG0 = 49
S_CARRY = 50
S_NR = 51
S_RECA = 52
S_RECB = 53
S_SAVE = 54
S_EXM = 56
K2_SGPRS = 90


def coef_stage(a):
    R, H, FA, FY, P = VREC, VH, VFA, VFY, VP
    if ABL.get("NOCOEF"):
        return
    a(f"v_lshlrev_b32 v{FA}, 16, v{R}")
    a(f"v_and_b32 v{FA+1}, 0xffff0000, v{R}")
    a(f"v_lshlrev_b32 v{FA+2}, 16, v{R+1}")
    a(f"v_and_b32 v{FA+3}, 0xffff0000, v{R+1}")
    a(f"v_lshlrev_b32 v{FY}, 16, v{R+2}")
    a(f"v_and_b32 v{FY+1}, 0xffff0000, v{R+2}")
    a(f"v_lshlrev_b32 v{FY+2}, 16, v{R+3}")
    for j in range(3):
        for d in range(4):
            a(f"v_mul_f32 v{P+d}, v{FA+d}, v{FY+j}")
        d0 = R + 2 if j == 0 else H + 2 * (j - 1)
        a(f"v_cvt_pk_bf16_f32 v{d0}, v{P}, v{P+1}")
        a(f"v_cvt_pk_bf16_f32 v{d0+1}, v{P+2}, v{P+3}")
    a(f"ds_write_b128 v{VCWADDR}, v[{R}:{R+3}]")
    a(f"ds_write_b128 v{VCWADDR}, v[{H}:{H+3}] offset:128")


def row_from_rec(a):
    a(f"v_lshrrev_b32 v{VROW}, 7, v{VREC+3}")
    a(f"v_and_b32 v{VROW}, 0x1fffe00, v{VROW}")


def dma_addr(a, u):
    for q in range(4):
        j0 = 8 * u + 2 * q
        a(f"v_add_u32_dpp v{VADDR+q}, v{VROW}, v{VVOFF+q} row_newbcast:{j0} row_mask:0xf bank_mask:0x3")
        a(f"v_add_u32_dpp v{VADDR+q}, v{VROW}, v{VVOFF+q} row_newbcast:{j0+1} row_mask:0xf bank_mask:0xc")


def dma4(a, slot):
    if ABL.get("NODMA"):
        return
    for q in range(4):
        a(f"buffer_load_dwordx4 v{VADDR+q}, s[{S_X}:{S_X+3}], 0 offen offset:{1024*q + 128*slot} lds")


def b_reads(a, slot):
    if ABL.get("NOB"):
        return
    B = VB0 if slot == 0 else VB1
    for t in range(4):
        a(f"ds_read_b64_tr_b16 v[{B+4*t}:{B+4*t+1}], v{VBADDR+t} offset:{4096*slot}")
        a(f"ds_read_b64_tr_b16 v[{B+4*t+2}:{B+4*t+3}], v{VBADDR+t} offset:{4096*slot+2048}")


def mfma_block(a, bb, areg, fresh):
    if ABL.get("NOMFMA"):
        return
    B = VB0 if bb == 0 else VB1
    for t in range(4):
        acc = VACC + 16 * bb + 4 * t
        c = "0" if fresh else f"v[{acc}:{acc+3}]"
        a(f"v_mfma_f32_16x16x32_bf16 v[{acc}:{acc+3}], v[{areg}:{areg+3}], v[{B+4*t}:{B+4*t+3}], {c}")


def node_epilogue(a):
    a(f"s_set_gpr_idx_on s{S_IDX}, gpr_idx(SRC2,DST)")
    a(f"s_add_u32 s{S_SEG}, s{S_SEG}, 1")
    for bb in range(2):
        for d in range(4):
            for t in range(4):
                if ABL.get("NOEPI"):
                    continue
                u = VU + 4 * bb + t
                a(f"v_fma_f32 v{u}, v{VW+16*bb+4*t+d}, v{VACC+16*bb+4*t+d}, v{u}")
    a("s_set_gpr_idx_off")
    a(f"v_readlane_b32 s{S_END}, v{VSEGEND}, s{S_SEG}")
    a(f"s_add_u32 s{S_IDX}, s{S_IDX}, 8")
    if ABL.get("NPH") == 2:
        a(f"s_cmp_eq_u32 s{S_IDX}, 80")
        a(f"s_cselect_b32 s{S_IDX}, 0, s{S_IDX}")


def mask_addr(a, ws):
    a(f"s_sub_u32 s{S_T0}, s{S_END}, s{ws}")
    a(f"s_lshl_b32 s{S_T0}, s{S_T0}, 6")
    a(f"v_add_u32 v{VT}, s{S_T0}, v{VMASKB}")


def split_a(a):
    for r in range(4):
        a(f"v_and_b32 v{VAM+r}, v{VA+r}, v{VM+r}")
    for r in range(4):
        a(f"v_xor_b32 v{VA+r}, v{VA+r}, v{VAM+r}")


def window_loads(a, u, L, ws, we, bnd):
    a("s_waitcnt vmcnt(4)")
    b_reads(a, 0)
    if bnd:
        mask_addr(a, ws)
    a("s_waitcnt vmcnt(0)")
    b_reads(a, 1)
    a(f"ds_read_b64_tr_b16 v[{VA}:{VA+1}], v{VAADDR} offset:{1024*u}")
    a(f"ds_read_b64_tr_b16 v[{VA+2}:{VA+3}], v{VAADDR+1} offset:{1024*u}")
    tail = 2
    if bnd:
        a(f"ds_read_b128 v[{VM}:{VM+3}], v{VT}")
        tail += 1
    if u == 0:
        a(f"ds_read_b128 v[{VREC}:{VREC+3}], v{VRECADDR}")
        tail += 1
    nb = 0 if ABL.get("NOB") else 8
    a(f"s_cmp_ge_u32 s{we}, s{S_NW}")
    a(f"s_cbranch_scc1 {L}_nodma")
    a(f"s_mov_b32 m0, s{S_RING0}")
    a(f"s_waitcnt lgkmcnt({min(15, nb + tail)})")
    dma4(a, 0)
    a(f"s_mov_b32 m0, s{S_RING1}")
    a(f"s_waitcnt lgkmcnt({tail})")
    dma4(a, 1)
    a(f"{L}_nodma:")
    a("s_waitcnt lgkmcnt(0)")
    if u == 0:
        a(f"v_add_u32 v{VRECADDR}, 1024, v{VRECADDR}")
        row_from_rec(a)


def window(a, u, n):
    L = f"{n}_w{u}"
    ws, we = (S_WS0, S_WE) if u == 0 else (S_WE, S_WS0)
    a(f"{L}:")
    a(f"s_add_u32 s{we}, s{ws}, 32")
    a(f"s_cmp_le_u32 s{S_END}, s{we}")
    a(f"s_cbranch_scc1 {L}_bnd")
    window_loads(a, u, L + "n", ws, we, False)
    mfma_block(a, 0, VA, False)
    mfma_block(a, 1, VA, False)
    a(f"s_branch {L}_done")
    a(f"{L}_bnd:")
    window_loads(a, u, L + "b", ws, we, True)
    split_a(a)
    a("s_nop 0")
    mfma_block(a, 0, VAM, False)
    mfma_block(a, 1, VAM, False)
    node_epilogue(a)
    a(f"{L}_more:")
    a(f"s_cmp_le_u32 s{S_END}, s{we}")
    a(f"s_cbranch_scc1 {L}_again")
    mfma_block(a, 0, VA, True)
    mfma_block(a, 1, VA, True)
    a(f"{L}_done:")
    dma_addr(a, u)
    if u == 1:
        coef_stage(a)
    a(f"s_cmp_ge_u32 s{we}, s{S_NW}")
    a(f"s_cbranch_scc1 {n}_streamdone")


def window_again(a, u, n):
    L = f"{n}_w{u}"
    ws, we = (S_WS0, S_WE) if u == 0 else (S_WE, S_WS0)
    a(f"{L}_again:")
    mask_addr(a, ws)
    a(f"ds_read_b128 v[{VM}:{VM+3}], v{VT}")
    a("s_waitcnt lgkmcnt(0)")
    split_a(a)
    a("s_nop 0")
    mfma_block(a, 0, VAM, True)
    mfma_block(a, 1, VAM, True)
    node_epilogue(a)
    a(f"s_branch {L}_more")


def gen_k2(cfg):
    NPH = cfg["NPH"]
    NS = 10 * NPH
    BSH = 3 + NPH
    PF = cfg["PF"]
    TSV[0] = 1
    a = Asm()
    n = "k2"
    lane = VLANE
    a(f".globl {K2_NAME}\n.p2align 8\n.type {K2_NAME},@function\n{K2_NAME}:")
    a(f"s_cmp_ge_u32 s2, {NB}\ns_cbranch_scc1 {n}_end")
    a("s_load_dwordx2 s[36:37], s[0:1], 0")
    a("s_load_dwordx2 s[38:39], s[0:1], 72")
    a("s_load_dwordx2 s[40:41], s[0:1], 88")
    a(f"s_and_b32 s{S_T0}, s2, 7")
    a(f"s_lshr_b32 s{S_RANK}, s2, 3")
    a(f"s_mul_i32 s{S_BKT}, s{S_T0}, 31")
    a(f"s_min_u32 s{S_T0}, s{S_T0}, 2")
    a(f"s_add_u32 s{S_BKT}, s{S_BKT}, s{S_T0}")
    a(f"s_add_u32 s{S_BKT}, s{S_BKT}, s{S_RANK}")
    a(f"v_lshrrev_b32 v1, 6, v0")
    a(f"v_and_b32 v{lane}, 63, v0")
    a(f"v_readfirstlane_b32 s{S_WAVE}, v1")
    a(f"v_lshrrev_b32 v{T0}, 4, v0")
    a(f"v_and_b32 v3, 15, v0")
    a(f"v_lshlrev_b32 v{T1}, 10, v{T0}")
    a(f"v_mul_u32_u24 v4, {CH}, v{T0}")
    a(f"v_add_u32 v4, v4, v3")
    a(f"v_add_u32 v5, 16, v3")
    a(f"v_lshlrev_b32 v7, 2, v0")
    a(f"v_mov_b32 v6, 0")
    a(f"s_lshr_b32 s{S_GAM}, s{S_WAVE}, 1")
    a(f"s_and_b32 s{S_HB}, s{S_WAVE}, 1")
    a(f"s_lshl_b32 s{S_T0}, s{S_BKT}, 2")
    a(f"v_cmp_gt_u32 vcc, 132, v0")
    a(f"s_and_saveexec_b64 s[{S_SAVE}:{S_SAVE+1}], vcc")
    a(f"ds_write_b32 v7, v6 offset:{CNT}")
    a(f"s_mov_b64 exec, s[{S_SAVE}:{S_SAVE+1}]")
    a("s_waitcnt lgkmcnt(0)")
    if TS_ON:
        a("s_mov_b32 s100, s40\ns_mov_b32 s101, s41")
    stamp(a, 0)
    srd(a, S_WS, 40, 41, WS_SIZE)
    for k in range(8):
        a(f"buffer_load_dword v{TAB(k)}, v{T1}, s[{S_WS}:{S_WS+3}], s{S_T0} offen")
        if k < 7:
            a(f"s_add_u32 s{S_T0}, s{S_T0}, 32768")
    a(f"s_sub_u32 s{S_X}, s36, 4096\ns_subb_u32 s{S_X+1}, s37, 0")
    a(f"s_mov_b32 s{S_X+2}, {N*512+4096}\ns_mov_b32 s{S_X+3}, 0x20000")
    srd(a, S_OUT, 38, 39, N * 512)
    a(f"v_lshlrev_b32 v{T2}, 4, v{lane}")
    a(f"s_lshl_b32 s{S_T0}, s{S_HB}, 13\ns_add_u32 s{S_T0}, s{S_T0}, {WS_WRED}")
    for k in range(8):
        if k == 4:
            a(f"s_add_u32 s{S_T0}, s{S_T0}, 4096")
        a(f"buffer_load_dwordx4 v[{VW+4*k}:{VW+4*k+3}], v{T2}, s[{S_WS}:{S_WS+3}], s{S_T0} offen offset:{1024*(k%4)}")
    a(f"s_mov_b32 s{S_RECA}, {WS_RECA}\ns_mov_b32 s{S_RECB}, {WS_RECB}")
    a(f"s_mov_b32 s{S_M}, 0\ns_mov_b32 s{S_R0}, 0")
    stamp(a, 1)
    for k in range(8):
        a(f"s_waitcnt vmcnt({15 - k + 2*k})" if False else f"s_waitcnt vmcnt({15 + k})")
        e0 = S_EXM + 2 * k
        a(f"v_cmp_gt_u32_sdwa s[{e0}:{e0+1}], v{TAB(k)}, v3 src0_sel:WORD_1 src1_sel:DWORD")
        a(f"v_add_u32_sdwa v{T0}, v{TAB(k)}, v4 dst_sel:DWORD dst_unused:UNUSED_PAD src0_sel:WORD_0 src1_sel:DWORD")
        a(f"v_lshlrev_b32 v{T1}, 4, v{T0}")
        a(f"s_mov_b64 exec, s[{e0}:{e0+1}]")
        a(f"buffer_load_dwordx4 v[{REC(k)}:{REC(k)+3}], v{T1}, s[{S_WS}:{S_WS+3}], s{S_RECA} offen")
        a(f"buffer_load_ubyte v{BIN(k)}, v{T0}, s[{S_WS}:{S_WS+3}], s{S_RECB} offen")
        a("s_mov_b64 exec, -1")
        if k < 7:
            a(f"s_add_u32 s{S_RECA}, s{S_RECA}, {32*CH*16}\ns_add_u32 s{S_RECB}, s{S_RECB}, {32*CH}")
    a(f"s_mov_b32 s{S_RECA}, {WS_RECA + 256}\ns_mov_b32 s{S_RECB}, {WS_RECB + 16}")
    for k in range(8):
        e1 = S_EXM + 16 + 2 * k
        a(f"v_cmp_gt_u32_sdwa s[{e1}:{e1+1}], v{TAB(k)}, v5 src0_sel:WORD_1 src1_sel:DWORD")
        a(f"v_add_u32_sdwa v{T0}, v{TAB(k)}, v4 dst_sel:DWORD dst_unused:UNUSED_PAD src0_sel:WORD_0 src1_sel:DWORD")
        a(f"s_cmp_eq_u64 s[{e1}:{e1+1}], 0")
        a(f"s_cbranch_scc1 {n}_p1_{k}")
        a(f"v_lshlrev_b32 v{T1}, 4, v{T0}")
        a(f"s_mov_b64 exec, s[{e1}:{e1+1}]")
        a(f"buffer_load_dwordx4 v[{REC(8+k)}:{REC(8+k)+3}], v{T1}, s[{S_WS}:{S_WS+3}], s{S_RECA} offen")
        a(f"buffer_load_ubyte v{BIN(8+k)}, v{T0}, s[{S_WS}:{S_WS+3}], s{S_RECB} offen")
        a("s_mov_b64 exec, -1")
        a(f"{n}_p1_{k}:")
        if k < 7:
            a(f"s_add_u32 s{S_RECA}, s{S_RECA}, {32*CH*16}\ns_add_u32 s{S_RECB}, s{S_RECB}, {32*CH}")
    stamp(a, 2)
    a(f"v_max3_u32 v{T0}, v{TAB(0)}, v{TAB(1)}, v{TAB(2)}")
    a(f"v_max3_u32 v{T1}, v{TAB(3)}, v{TAB(4)}, v{TAB(5)}")
    a(f"v_max3_u32 v{T0}, v{T0}, v{TAB(6)}, v{TAB(7)}")
    a(f"v_max_u32 v{T0}, v{T0}, v{T1}")
    a(f"v_cmp_le_u32 vcc, {33 << 16}, v{T0}")
    a(f"s_mov_b64 s[{S_T0+10}:{S_T0+11}], vcc")
    for it in range(2):
        a(f"v_add_u32 v{T0}, {512*it}, v0")
        if it == 1:
            a(f"v_cmp_gt_u32 vcc, 528, v{T0}")
            a(f"s_and_saveexec_b64 s[{S_SAVE}:{S_SAVE+1}], vcc")
            a(f"s_cbranch_execz {n}_nomask")
        a(f"v_lshrrev_b32 v{T1}, 4, v{T0}")
        a(f"v_lshlrev_b32 v{T2}, 3, v{T0}\nv_and_b32 v{T2}, 16, v{T2}")
        a(f"v_and_b32 v{T3}, 12, v{T0}\nv_or_b32 v{T2}, v{T2}, v{T3}")
        a(f"v_lshlrev_b32 v{T3}, 1, v{T0}\nv_and_b32 v{T3}, 2, v{T3}\nv_or_b32 v{T2}, v{T2}, v{T3}")
        a(f"v_sub_u32 v{T1}, v{T1}, v{T2}")
        a(f"v_med3_i32 v{T1}, v{T1}, 0, 2")
        a(f"v_lshlrev_b32 v{T1}, 4, v{T1}")
        a(f"v_lshlrev_b32 v{T2}, v{T1}, 1\nv_subrev_u32 v{T2}, 1, v{T2}" if False else f"v_mov_b32 v{T2}, -1")
        a(f"v_sub_u32 v{T1}, 32, v{T1}")
        a(f"v_lshrrev_b64 v[{T4}:{T5}], v{T1}, v[{T6}:{T7}]" if False else f"v_mov_b32 v{T3}, 0")
        a(f"v_cmp_gt_u32 vcc, 32, v{T1}")
        a(f"v_lshrrev_b32 v{T2}, v{T1}, v{T2}")
        a(f"v_lshlrev_b32 v{T0}, 2, v{T0}")
        a(f"v_cndmask_b32 v{T2}, v{T3}, v{T2}, vcc")
        a(f"ds_write_b32 v{T0}, v{T2} offset:{MASK}")
        if it == 1:
            a(f"{n}_nomask:")
            a(f"s_mov_b64 exec, s[{S_SAVE}:{S_SAVE+1}]")
    a(f"v_lshrrev_b32 v{T0}, 3, v{lane}")
    a(f"v_and_b32 v{T1}, 7, v{lane}")
    a(f"v_and_b32 v{T2}, 6, v{T0}\nv_xor_b32 v{T1}, v{T1}, v{T2}\nv_lshlrev_b32 v{T1}, 4, v{T1}")
    a(f"s_lshl_b32 s{S_T0}, s{S_HB}, 8")
    for q in range(4):
        a(f"s_add_u32 s{S_T0+1}, s{S_T0}, {4096-1024*q}")
        a(f"v_add_u32 v{VVOFF+q}, s{S_T0+1}, v{T1}")
    a(f"s_lshl_b32 s{S_RING0}, s{S_WAVE}, 13\ns_add_u32 s{S_RING0}, s{S_RING0}, {RING}")
    a(f"s_add_u32 s{S_RING1}, s{S_RING0}, {4096-128}")
    a(f"v_lshrrev_b32 v{T0}, 2, v{lane}")
    a(f"v_and_b32 v{T1}, 3, v{lane}")
    a(f"v_lshlrev_b32 v{T2}, 7, v{T0}\nv_lshl_add_u32 v{T2}, v{T1}, 3, v{T2}\nv_add_u32 v{T2}, s{S_RING0}, v{T2}")
    a(f"v_lshlrev_b32 v{T3}, 4, v{T0}\nv_and_b32 v{T3}, 0x60, v{T3}")
    for t in range(4):
        a(f"v_xor_b32 v{T4}, {32*t}, v{T3}\nv_add_u32 v{VBADDR+t}, v{T2}, v{T4}")
    a(f"s_lshl_b32 s{S_T0}, s{S_WAVE}, 11\ns_add_u32 s{S_T0}, s{S_T0}, {COEF}")
    a(f"v_and_b32 v{T2}, 7, v{T0}")
    a(f"v_lshrrev_b32 v{T3}, 3, v{T0}")
    a(f"v_lshlrev_b32 v{T4}, 6, v{T1}\nv_and_b32 v{T4}, 0x80, v{T4}")
    a(f"v_lshlrev_b32 v{T5}, 3, v{T1}\nv_and_b32 v{T5}, 8, v{T5}\nv_or_b32 v{T4}, v{T4}, v{T5}\nv_add_u32 v{T4}, s{S_T0}, v{T4}")
    for k in range(2):
        a(f"v_add_u32 v{T5}, {2*k}, v{T3}")
        a(f"v_lshlrev_b32 v{T6}, 1, v{T5}\nv_xor_b32 v{T6}, v{T2}, v{T6}\nv_lshlrev_b32 v{T6}, 4, v{T6}")
        a(f"v_lshl_add_u32 v{T6}, v{T5}, 8, v{T6}\nv_add_u32 v{VAADDR+k}, v{T4}, v{T6}")
    a(f"v_lshrrev_b32 v{T0}, 4, v{lane}")
    a(f"v_lshlrev_b32 v{VMASKB}, 4, v{T0}")
    a(f"v_bfe_u32 v{T1}, v{lane}, 3, 1")
    a(f"v_bfe_u32 v{T2}, v{lane}, 1, 2")
    a(f"v_and_b32 v{T3}, 1, v{lane}")
    a(f"v_lshl_add_u32 v{T3}, v{T0}, 1, v{T3}")
    a(f"v_lshlrev_b32 v{T4}, 1, v{T2}\nv_xor_b32 v{T4}, v{T3}, v{T4}\nv_lshlrev_b32 v{T4}, 4, v{T4}")
    a(f"v_lshl_add_u32 v{T4}, v{T2}, 8, v{T4}\nv_lshl_add_u32 v{T4}, v{T1}, 10, v{T4}")
    a(f"v_add_u32 v{VCWADDR}, s{S_T0}, v{T4}")
    a(f"v_lshl_add_u32 v{T3}, v{T2}, 3, v{T3}\nv_lshl_add_u32 v{T3}, v{T1}, 5, v{T3}")
    a(f"v_lshlrev_b32 v2, 4, v{T3}")
    for r in range(80):
        a(f"v_mov_b32 v{VU+r}, 0")
    a("s_waitcnt lgkmcnt(0)")
    a("s_barrier")
    a(f"s_mov_b64 exec, s[{S_T0+10}:{S_T0+11}]")
    a(f"v_mov_b32 v{T1}, {FLAG}\nv_mov_b32 v{T2}, 1")
    a(f"ds_write_b32 v{T1}, v{T2}")
    a("s_mov_b64 exec, -1")
    stamp(a, 3)
    a("s_waitcnt vmcnt(0)")
    stamp(a, 4)
    a(f"{n}_rank:")
    a("v_mov_b32 v7, 1")
    for k in range(16):
        e = S_EXM + 2 * k
        if k >= 8:
            a(f"s_cmp_eq_u64 s[{e}:{e+1}], 0\ns_cbranch_scc1 {n}_rk{k}")
        a(f"s_mov_b64 exec, s[{e}:{e+1}]")
        a(f"v_lshlrev_b32 v{BIN(k)}, 2, v{BIN(k)}")
        a(f"ds_add_rtn_u32 v{RNK(k)}, v{BIN(k)}, v7 offset:{CNT}")
        if k >= 8:
            a(f"{n}_rk{k}:")
    a("s_mov_b64 exec, -1")
    a("s_waitcnt lgkmcnt(0)")
    a("s_barrier")
    stamp(a, 5)
    a(f"v_lshlrev_b32 v6, 2, v{lane}")
    a(f"v_mov_b32 v{T7}, {FLAG}")
    a(f"ds_read_b32 v{T0}, v6 offset:{CNT}")
    if NPH == 2:
        a(f"ds_read_b32 v{T1}, v6 offset:{CNT+256}")
    a(f"ds_read_b32 v{T7}, v{T7}")
    if PF:
        a(f"s_cmp_lg_u32 s{S_R0}, 0\ns_cbranch_scc1 {n}_nopf")
        a(f"s_mul_i32 s{S_T0}, s{S_RANK}, {8*PF*1024}")
        a(f"s_mul_i32 s{S_T0+1}, s{S_WAVE}, {PF*1024}")
        a(f"s_add_u32 s{S_T0}, s{S_T0}, s{S_T0+1}\ns_add_u32 s{S_T0}, s{S_T0}, 4096")
        a(f"v_lshlrev_b32 v{T6}, 4, v{lane}")
        for k in range(PF):
            a(f"buffer_load_dwordx4 v[252:255], v{T6}, s[{S_X}:{S_X+3}], s{S_T0} offen")
            if k < PF - 1:
                a(f"s_add_u32 s{S_T0}, s{S_T0}, 1024")
        a(f"{n}_nopf:")
    a("s_waitcnt lgkmcnt(0)")
    regs = [(T0, T2)] if NPH == 1 else [(T0, T2), (T1, T3)]
    for c, s_ in regs:
        a(f"v_mov_b32 v{s_}, v{c}")
    a(f"v_readfirstlane_b32 s{S_T0+8}, v{T7}")
    for sh in (1, 2, 4, 8):
        a("s_nop 1" if NPH == 1 else "s_nop 0")
        for c, s_ in regs:
            a(f"v_add_u32_dpp v{s_}, v{s_}, v{s_} row_shr:{sh} row_mask:0xf bank_mask:0xf bound_ctrl:1")
    if NPH == 1:
        a("s_nop 1")
        a(f"v_mov_b32_dpp v{T4}, v{T2} row_newbcast:15 row_mask:0xf bank_mask:0xf")
        a(f"v_add_u32 v{T5}, 31, v{T4}\nv_and_b32 v{T5}, -32, v{T5}")
        a(f"v_mov_b32 v{T6}, v{T5}")
        a("s_nop 1")
        a(f"v_add_u32_dpp v{T6}, v{T5}, v{T6} row_bcast:15 row_mask:0xa bank_mask:0xf")
        a("s_nop 1")
        a(f"v_add_u32_dpp v{T6}, v{T6}, v{T6} row_bcast:31 row_mask:0xc bank_mask:0xf")
        a(f"s_lshl_b32 s{S_SEG0}, s{S_GAM}, 4")
        a(f"v_sub_u32 v{T5}, v{T6}, v{T5}")
        a(f"v_readlane_b32 s{S_T0}, v{T6}, 63")
        a(f"v_readlane_b32 s{S_G}, v{T5}, s{S_SEG0}")
        a(f"v_readlane_b32 s{S_LEN}, v{T4}, s{S_SEG0}")
        a(f"v_sub_u32 v{T1}, v{T2}, v{T0}\nv_add_u32 v{T1}, v{T1}, v{T5}")
        a(f"ds_write_b32 v6, v{T1} offset:{BST}")
        a(f"v_and_b32 v{T3}, 15, v{lane}")
        a(f"v_mov_b32 v{T4}, 0x7fffffff")
        a(f"v_cmp_gt_u32 vcc, {NS}, v{T3}")
        a("s_nop 1")
        a(f"v_cndmask_b32 v{VSEGEND}, v{T4}, v{T2}, vcc")
    else:
        a("s_nop 0")
        for c, s_ in regs:
            a(f"v_add_u32_dpp v{s_}, v{s_}, v{s_} row_bcast:15 row_mask:0xa bank_mask:0xf")
        a("s_nop 0")
        a(f"v_readlane_b32 s{S_T0+1}, v{T2}, 31\nv_readlane_b32 s{S_T0+2}, v{T2}, 63")
        a(f"v_readlane_b32 s{S_T0+3}, v{T3}, 31\nv_readlane_b32 s{S_T0+4}, v{T3}, 63")
        a(f"s_add_u32 s{S_T0+5}, s{S_T0+1}, 31\ns_and_b32 s{S_T0+5}, s{S_T0+5}, -32")
        a(f"s_add_u32 s{S_T0+6}, s{S_T0+2}, 31\ns_and_b32 s{S_T0+6}, s{S_T0+6}, -32\ns_add_u32 s{S_T0+6}, s{S_T0+6}, s{S_T0+5}")
        a(f"s_add_u32 s{S_T0+7}, s{S_T0+3}, 31\ns_and_b32 s{S_T0+7}, s{S_T0+7}, -32\ns_add_u32 s{S_T0+7}, s{S_T0+7}, s{S_T0+6}")
        a(f"s_add_u32 s{S_T0}, s{S_T0+4}, 31\ns_and_b32 s{S_T0}, s{S_T0}, -32\ns_add_u32 s{S_T0}, s{S_T0}, s{S_T0+7}")
        a(f"v_mov_b32 v{T4}, 0\nv_mov_b32 v{T5}, s{S_T0+6}")
        a(f"s_mov_b32 exec_lo, 0")
        a(f"v_mov_b32 v{T4}, s{S_T0+5}\nv_mov_b32 v{T5}, s{S_T0+7}")
        a("s_mov_b64 exec, -1")
        a(f"v_sub_u32 v{T6}, v{T2}, v{T0}\nv_add_u32 v{T6}, v{T6}, v{T4}")
        a(f"v_sub_u32 v{T7}, v{T3}, v{T1}\nv_add_u32 v{T7}, v{T7}, v{T5}")
        a(f"ds_write_b32 v6, v{T6} offset:{BST}\nds_write_b32 v6, v{T7} offset:{BST+256}")
        a(f"s_mov_b32 s{S_G}, 0\ns_mov_b32 s{S_LEN}, s{S_T0+1}")
        for g in (1, 2, 3):
            a(f"s_cmp_eq_u32 s{S_GAM}, {g}")
            a(f"s_cselect_b32 s{S_G}, s{S_T0+4+g}, s{S_G}")
            a(f"s_cselect_b32 s{S_LEN}, s{S_T0+1+g}, s{S_LEN}")
        a(f"s_and_b32 s{S_SEG0}, s{S_GAM}, 1\ns_lshl_b32 s{S_SEG0}, s{S_SEG0}, 5")
        a(f"s_cmp_ge_u32 s{S_GAM}, 2\ns_cbranch_scc0 {n}_se0")
        a(f"v_mov_b32 v{T2}, v{T3}")
        a(f"{n}_se0:")
        a(f"v_and_b32 v{T3}, 31, v{lane}")
        a(f"v_mov_b32 v{T4}, 0x7fffffff")
        a(f"v_cmp_gt_u32 vcc, {NS}, v{T3}")
        a("s_nop 1")
        a(f"v_cndmask_b32 v{VSEGEND}, v{T4}, v{T2}, vcc")
    a(f"s_cmp_gt_u32 s{S_T0}, {CAPROWS}\ns_cselect_b32 s{S_T0+8}, 1, s{S_T0+8}")
    a(f"s_cmp_lg_u32 s{S_T0+8}, 0\ns_cbranch_scc1 {n}_slow")
    for k in range(16):
        e = S_EXM + 2 * k
        if k >= 8:
            a(f"s_cmp_eq_u64 s[{e}:{e+1}], 0\ns_cbranch_scc1 {n}_bs{k}")
        a(f"s_mov_b64 exec, s[{e}:{e+1}]")
        a(f"ds_read_b32 v{BIN(k)}, v{BIN(k)} offset:{BST}")
        if k >= 8:
            a(f"{n}_bs{k}:")
    a("s_mov_b64 exec, -1")
    a(f"s_add_u32 s{S_NW}, s{S_LEN}, 31\ns_and_b32 s{S_NW}, s{S_NW}, -32")
    a(f"v_add_u32 v6, s{S_LEN}, v{lane}")
    a(f"v_cmp_gt_u32 vcc, s{S_NW}, v6")
    a(f"v_add_u32 v6, s{S_G}, v6\nv_lshlrev_b32 v6, 4, v6")
    a(f"v_mov_b32 v{T4}, 0\nv_mov_b32 v{T5}, 0\nv_mov_b32 v{T6}, 0\nv_mov_b32 v{T7}, 0xffff0000")
    a(f"s_and_saveexec_b64 s[{S_SAVE}:{S_SAVE+1}], vcc")
    a(f"ds_write_b128 v6, v[{T4}:{T7}] offset:{RECS}")
    a("s_mov_b64 exec, -1")
    a("s_waitcnt lgkmcnt(1)" if False else "s_waitcnt lgkmcnt(0)")
    for k in range(16):
        e = S_EXM + 2 * k
        if k >= 8:
            a(f"s_cmp_eq_u64 s[{e}:{e+1}], 0\ns_cbranch_scc1 {n}_pl{k}")
        a(f"s_mov_b64 exec, s[{e}:{e+1}]")
        a(f"v_add_lshl_u32 v{BIN(k)}, v{BIN(k)}, v{RNK(k)}, 4")
        a(f"ds_write_b128 v{BIN(k)}, v[{REC(k)}:{REC(k)+3}] offset:{RECS}")
        if k >= 8:
            a(f"{n}_pl{k}:")
    a("s_mov_b64 exec, -1")
    a(f"s_lshl_b32 s{S_T0}, s{S_G}, 4\ns_add_u32 s{S_T0}, s{S_T0}, {RECS}")
    a(f"v_add_u32 v{VRECADDR}, s{S_T0}, v2")
    for r in range(0, 32, 2):
        a(f"v_mov_b64 v[{VACC+r}:{VACC+r+1}], 0")
    a(f"s_mov_b32 s{S_WS0}, 0\ns_mov_b32 s{S_SEG}, s{S_SEG0}\ns_mov_b32 s{S_IDX}, 0")
    a(f"v_readlane_b32 s{S_END}, v{VSEGEND}, s{S_SEG0}")
    a("s_waitcnt lgkmcnt(0)")
    a("s_barrier")
    stamp(a, 6)
    a(f"s_cmp_eq_u32 s{S_NW}, 0\ns_cbranch_scc1 {n}_streamdone")
    a(f"ds_read_b128 v[{VREC}:{VREC+3}], v{VRECADDR}")
    a(f"s_mov_b32 m0, s{S_RING0}")
    a(f"v_add_u32 v{VRECADDR}, 1024, v{VRECADDR}")
    a("s_waitcnt lgkmcnt(0)")
    row_from_rec(a)
    a("s_nop 1")
    dma_addr(a, 0)
    dma4(a, 0)
    a(f"s_mov_b32 m0, s{S_RING1}")
    a("s_nop 0")
    dma4(a, 1)
    dma_addr(a, 1)
    coef_stage(a)
    stamp(a, 7)
    window(a, 0, n)
    window(a, 1, n)
    a(f"s_branch {n}_w0")
    window_again(a, 0, n)
    window_again(a, 1, n)
    a(f"{n}_streamdone:")
    stamp(a, 8)
    a(f"s_add_u32 s{S_R0}, s{S_R0}, {MR_CAP}")
    a(f"s_cmp_lt_u32 s{S_R0}, s{S_M}\ns_cbranch_scc1 {n}_nextround")

    a(f"{n}_final:")
    WF = 120
    a(f"s_and_b32 s{S_T0}, s{S_WAVE}, 3")
    a(f"s_mul_i32 s{S_T0+1}, s{S_T0}, 10240\ns_add_u32 s{S_T0+1}, s{S_T0+1}, {WS_WFRAG}")
    a(f"v_lshlrev_b32 v4, 4, v{lane}")
    for k in range(10):
        if k and k % 4 == 0:
            a(f"s_add_u32 s{S_T0+1}, s{S_T0+1}, 4096")
        a(f"buffer_load_dwordx4 v[{WF+4*k}:{WF+4*k+3}], v4, s[{S_WS}:{S_WS+3}], s{S_T0+1} offen offset:{1024*(k%4)}")
    for i in range(10):
        for bb in range(2):
            u = VU + 8 * i + 4 * bb
            a(f"v_cvt_pk_bf16_f32 v{u}, v{u}, v{u+1}")
            a(f"v_cvt_pk_bf16_f32 v{u+1}, v{u+2}, v{u+3}")
    a(f"s_lshl_b32 s{S_T0+2}, s{S_HB}, 10")
    a(f"s_mul_i32 s{S_T0+3}, s{S_GAM}, {USTR}\ns_add_u32 s{S_T0+2}, s{S_T0+2}, s{S_T0+3}")
    a(f"v_lshlrev_b32 v5, 3, v{lane}\nv_add_u32 v5, s{S_T0+2}, v5")
    a(f"v_add_u32 v6, {5*4*USTR}, v5")
    a("s_barrier")
    stamp(a, 9)
    for i in range(10):
        u = VU + 8 * i
        base, off = (5, i) if i < 5 else (6, i - 5)
        a(f"ds_write_b64 v{base}, v[{u}:{u+1}] offset:{off*4*USTR}")
        a(f"ds_write_b64 v{base}, v[{u+4}:{u+5}] offset:{off*4*USTR + 512}")
    a(f"v_and_b32 v5, 15, v{lane}\nv_lshrrev_b32 v6, 4, v{lane}")
    a(f"v_mul_u32_u24 v7, {USTR}, v5\nv_lshl_add_u32 v7, v6, 4, v7")
    a(f"s_mul_i32 s{S_T0+4}, s{S_BKT}, {BN*512}\ns_lshl_b32 s{S_T0+5}, s{S_T0}, 5\ns_add_u32 s{S_T0+4}, s{S_T0+4}, s{S_T0+5}")
    a(f"v_lshlrev_b32 v36, 9, v5\nv_lshl_add_u32 v36, v6, 3, v36\nv_add_u32 v36, s{S_T0+4}, v36")
    a(f"s_lshr_b32 s{S_T0+6}, s{S_WAVE}, 2")
    a(f"s_mul_i32 s{S_T0+7}, s{S_T0+6}, {16*USTR}")
    a(f"v_add_u32 v37, s{S_T0+7}, v7")
    a(f"s_lshl_b32 s{S_T0+7}, s{S_T0+6}, 13")
    a(f"v_add_u32 v38, s{S_T0+7}, v36")
    a(f"v_add_u32 v39, {32*USTR}, v7")
    a(f"v_add_u32 v40, {32*512}, v36")
    a("s_waitcnt lgkmcnt(0)")
    a("s_barrier")
    stamp(a, 10)
    blocks = {
        0: [((0, 0), 0), ((1, 1), 1), ((2, 2), 1), ((3, 3), 1)],
        1: [((0, 1), 2), ((1, 0), 3), ((3, 2), 4), ((2, 3), 4)],
        2: [((0, 2), 2), ((2, 0), 3), ((1, 3), 4), ((3, 1), 4)],
        3: [((0, 3), 2), ((3, 0), 3), ((2, 1), 4), ((1, 2), 4)],
    }
    UF = (164, 196)
    D = 88

    def reads(job, buf):
        o, vbase, d = job
        k = 0
        for ((beta, g), s) in blocks[o]:
            for h2 in range(2):
                a(f"ds_read_b128 v[{UF[buf]+4*k}:{UF[buf]+4*k+3}], v{vbase} offset:{(beta*4+g)*128 + h2*64}")
                k += 1

    def mmas(job, buf):
        o, vbase, d = job
        k = 0
        for ((beta, g), s) in blocks[o]:
            for h2 in range(2):
                c = "0" if k == 0 else f"v[{d}:{d+3}]"
                a(f"v_mfma_f32_16x16x32_bf16 v[{d}:{d+3}], v[{WF+8*s+4*h2}:{WF+8*s+4*h2+3}], v[{UF[buf]+4*k}:{UF[buf]+4*k+3}], {c}")
                k += 1

    def run_jobs(jobs, first_wait_vm):
        reads(jobs[0], 0)
        for i, job in enumerate(jobs):
            if i + 1 < len(jobs):
                reads(jobs[i + 1], (i + 1) & 1)
                a("s_waitcnt lgkmcnt(8)")
            else:
                a("s_waitcnt lgkmcnt(0)")
            if i == 0 and first_wait_vm:
                a("s_waitcnt vmcnt(0)")
            mmas(job, i & 1)

    def gate(d0, G):
        for r in range(4):
            a(f"v_mul_f32 v{G+r}, 0xbfb8aa3b, v{d0+r}")
        for r in range(4):
            a(f"v_exp_f32 v{G+r}, v{G+r}")
        a("s_nop 0")
        for r in range(4):
            a(f"v_add_f32 v{G+r}, 1.0, v{G+r}")
        for r in range(4):
            a(f"v_rcp_f32 v{G+r}, v{G+r}")
        a("s_nop 0")

    def store(o, d, G, voffs, tmp):
        if o:
            for r in range(4):
                a(f"v_mul_f32 v{d+r}, v{d+r}, v{G+r}")
        a(f"v_cvt_pk_bf16_f32 v{tmp}, v{d}, v{d+1}\nv_cvt_pk_bf16_f32 v{tmp+1}, v{d+2}, v{d+3}")
        a(f"buffer_store_dwordx2 v[{tmp}:{tmp+1}], v{voffs}, s[{S_OUT}:{S_OUT+3}], 0 offen offset:{128*o}")

    G1, G2 = 44, 48
    a(f"s_cmp_lg_u32 s{S_T0+6}, 0\ns_cbranch_scc1 {n}_t2b")
    for half in range(2):
        if half == 1:
            a(f"{n}_t2b:")
        jobs = [(o, 37, 88 + 4 * o) for o in range(4)] + [(0, 39, 104)]
        extra = [1] if half == 0 else [2, 3]
        jobs += [(o, 39, 108 + 4 * i) for i, o in enumerate(extra)]
        run_jobs(jobs, True)
        gate(88, G1)
        for o in range(4):
            store(o, 88 + 4 * o, G1, 38, 52 + 2 * o)
        gate(104, G2)
        a("v_cmp_gt_u32 vcc, 8, v5")
        a(f"s_and_saveexec_b64 s[{S_SAVE}:{S_SAVE+1}], vcc")
        if half == 0:
            store(0, 104, G2, 40, 60)
        for i, o in enumerate(extra):
            store(o, 108 + 4 * i, G2, 40, 62 + 2 * i)
        stamp(a, 11)
        stamp_flush(a, 12, 100, 101, S_WAVE, 1, 2)
        a("s_endpgm")

    a(f"{n}_slow:")
    a("s_waitcnt vmcnt(0) lgkmcnt(0)")
    a("v_lshlrev_b32 v2, 10, v0" if False else f"v_lshlrev_b32 v{T0}, 10, v0")
    a(f"s_lshl_b32 s{S_T0}, s{S_BKT}, 2")
    a("v_mov_b32 v3, 0")
    a(f"v_cmp_gt_u32 vcc, {NCH}, v0")
    a(f"s_and_saveexec_b64 s[{S_SAVE}:{S_SAVE+1}], vcc")
    a(f"s_cbranch_execz {n}_notab")
    a(f"buffer_load_dword v3, v{T0}, s[{S_WS}:{S_WS+3}], s{S_T0} offen offset:{WS_TAB}")
    a(f"{n}_notab:")
    a(f"s_mov_b64 exec, s[{S_SAVE}:{S_SAVE+1}]")
    a("s_waitcnt vmcnt(0)")
    a("v_lshrrev_b32 v4, 16, v3")
    a("v_and_b32 v3, 0xffff, v3")
    a("v_mov_b32 v5, v4")
    scan_add(a, 5)
    a("s_nop 0")
    a(f"v_readlane_b32 s{S_T0}, v5, 63")
    a(f"s_cmp_ge_u32 s{S_WAVE}, 4\ns_cbranch_scc1 {n}_nowtot")
    a(f"s_lshl_b32 s{S_T0+1}, s{S_WAVE}, 2\ns_add_u32 s{S_T0+1}, s{S_T0+1}, {WTOT}")
    a(f"v_mov_b32 v6, s{S_T0+1}\nv_mov_b32 v7, s{S_T0}")
    a("ds_write_b32 v6, v7")
    a(f"{n}_nowtot:")
    a("s_waitcnt lgkmcnt(0)")
    a("s_barrier")
    a(f"v_mov_b32 v6, {WTOT}")
    a(f"ds_read_b128 v[{T4}:{T7}], v6")
    a("s_waitcnt lgkmcnt(0)")
    for k in range(4):
        a(f"v_readfirstlane_b32 s{S_T0+k}, v{T4+k}")
    a(f"s_add_u32 s{S_T0+4}, s{S_T0}, s{S_T0+1}")
    a(f"s_add_u32 s{S_T0+5}, s{S_T0+4}, s{S_T0+2}")
    a(f"s_add_u32 s{S_M}, s{S_T0+5}, s{S_T0+3}")
    a(f"s_mov_b32 s{S_T0+6}, 0")
    a(f"s_cmp_eq_u32 s{S_WAVE}, 1\ns_cselect_b32 s{S_T0+6}, s{S_T0}, s{S_T0+6}")
    a(f"s_cmp_eq_u32 s{S_WAVE}, 2\ns_cselect_b32 s{S_T0+6}, s{S_T0+4}, s{S_T0+6}")
    a(f"s_cmp_eq_u32 s{S_WAVE}, 3\ns_cselect_b32 s{S_T0+6}, s{S_T0+5}, s{S_T0+6}")
    a(f"s_cmp_ge_u32 s{S_WAVE}, 4\ns_cbranch_scc1 {n}_round")
    a("v_lshlrev_b32 v7, 2, v0")
    a("v_sub_u32 v5, v5, v4")
    a(f"v_add_u32 v5, s{S_T0+6}, v5")
    a(f"v_mul_u32_u24 v6, {CH}, v0")
    a("v_add_u32 v6, v6, v3\nv_sub_u32 v6, v6, v5")
    a(f"v_add_u32 v{T0}, 1, v0\nv_lshl_or_b32 v6, v{T0}, 20, v6")
    a(f"v_mov_b32 v{T1}, 0\nv_mov_b32 v{T2}, 0x7fffffff")
    a(f"v_cmp_lt_u32 vcc, 0, v4\ns_nop 1\nv_cndmask_b32 v6, v{T1}, v6, vcc")
    a(f"v_cmp_gt_u32 vcc, {NCH}, v0\ns_nop 1\nv_cndmask_b32 v5, v{T2}, v5, vcc")
    a(f"ds_write_b32 v7, v5 offset:{PARR}")
    a(f"ds_write_b32 v7, v6 offset:{MVARR}")
    a(f"s_branch {n}_round")
    a(f"{n}_nextround:")
    a("s_waitcnt vmcnt(0) lgkmcnt(0)")
    a(f"{n}_round:")
    a("s_waitcnt lgkmcnt(0)")
    a("s_barrier")
    a(f"v_mov_b32 v{T4}, 0\nv_mov_b32 v{T5}, 0\nv_mov_b32 v{T6}, 0\nv_mov_b32 v{T7}, 0")
    a("v_lshlrev_b32 v6, 4, v0")
    a(f"ds_write_b128 v6, v[{T4}:{T7}] offset:{MARKS}")
    a("v_cmp_gt_u32 vcc, 256, v0")
    a(f"s_and_saveexec_b64 s[{S_SAVE}:{S_SAVE+1}], vcc")
    a(f"s_cbranch_execz {n}_z1")
    a(f"ds_write_b128 v6, v[{T4}:{T7}] offset:{MARKS+8192}")
    a(f"{n}_z1:")
    a(f"s_mov_b64 exec, s[{S_SAVE}:{S_SAVE+1}]")
    a("v_lshlrev_b32 v7, 2, v0")
    a("v_cmp_gt_u32 vcc, 132, v0")
    a(f"s_and_saveexec_b64 s[{S_SAVE}:{S_SAVE+1}], vcc")
    a(f"s_cbranch_execz {n}_z2")
    a(f"ds_write_b32 v7, v{T4} offset:{CNT}")
    a(f"{n}_z2:")
    a(f"s_mov_b64 exec, s[{S_SAVE}:{S_SAVE+1}]")
    a("s_waitcnt lgkmcnt(0)")
    a("s_barrier")
    a(f"s_sub_u32 s{S_MR}, s{S_M}, s{S_R0}")
    a(f"s_min_u32 s{S_MR}, s{S_MR}, {MR_CAP}")
    a(f"s_add_u32 s{S_Q}, s{S_MR}, 511\ns_lshr_b32 s{S_Q}, s{S_Q}, 9")
    a(f"s_mov_b32 s{S_NR}, s{S_Q}\ns_lshl_b32 s{S_Q}, s{S_Q}, 6")
    a(f"s_cmp_ge_u32 s{S_WAVE}, 4\ns_cbranch_scc1 {n}_nomark")
    a(f"ds_read_b32 v5, v7 offset:{PARR}")
    a(f"ds_read_b32 v6, v7 offset:{MVARR}")
    a("s_waitcnt lgkmcnt(0)")
    a(f"v_subrev_u32 v5, s{S_R0}, v5")
    a(f"v_cmp_gt_u32 vcc, s{S_MR}, v5")
    a(f"v_cmp_ne_u32 s[{S_T0}:{S_T0+1}], 0, v6")
    a(f"s_nop 0\ns_and_b64 vcc, vcc, s[{S_T0}:{S_T0+1}]")
    a(f"s_and_saveexec_b64 s[{S_SAVE}:{S_SAVE+1}], vcc")
    a(f"s_cbranch_execz {n}_nomark1")
    a(f"v_lshlrev_b32 v5, 2, v5\nds_write_b32 v5, v6 offset:{MARKS}")
    a(f"{n}_nomark1:")
    a(f"s_mov_b64 exec, s[{S_SAVE}:{S_SAVE+1}]")
    a(f"{n}_nomark:")
    a("s_waitcnt lgkmcnt(0)")
    a("s_barrier")
    MK0 = 136
    a(f"s_mul_i32 s{S_T0+8}, s{S_WAVE}, s{S_Q}")
    a(f"s_add_u32 s{S_T0+9}, s{S_T0+8}, s{S_R0}")
    for r in range(16):
        a(f"s_mov_b64 s[{S_EXM+2*r}:{S_EXM+2*r+1}], 0")
    a(f"s_mov_b32 s{S_RECA}, {WS_RECA}\ns_mov_b32 s{S_RECB}, {WS_RECB}")
    a(f"s_cmp_ge_u32 s{S_T0+8}, s{S_MR}\ns_cbranch_scc1 {n}_loaded")
    a(f"v_lshlrev_b32 v6, 4, v{lane}")
    a(f"ds_read_b128 v[{T4}:{T7}], v6 offset:{PARR}")
    a(f"v_add_u32 v{T0}, s{S_T0+8}, v{lane}")
    a(f"v_lshlrev_b32 v{T1}, 2, v{T0}")
    for r in range(6):
        a(f"ds_read_b32 v{MK0+r}, v{T1} offset:{MARKS+256*r}")
    a("s_waitcnt lgkmcnt(6)")
    a(f"s_mov_b32 s{S_T0}, 0")
    for k in range(4):
        a(f"v_cmp_ge_u32 vcc, s{S_T0+9}, v{T4+k}")
        a(f"s_bcnt1_i32_b64 s{S_T0+1}, vcc")
        a(f"s_add_u32 s{S_T0}, s{S_T0}, s{S_T0+1}")
    a(f"s_sub_u32 s{S_T0}, s{S_T0}, 1\ns_lshl_b32 s{S_T0}, s{S_T0}, 2\ns_add_u32 s{S_T0}, s{S_T0}, {MVARR}")
    a(f"v_mov_b32 v{T2}, s{S_T0}")
    a(f"ds_read_b32 v{T2}, v{T2}")
    a("s_waitcnt lgkmcnt(0)")
    a(f"v_readfirstlane_b32 s{S_CARRY}, v{T2}")
    for sh in (1, 2, 4, 8):
        for r in range(6):
            a(f"v_max_u32_dpp v{MK0+r}, v{MK0+r}, v{MK0+r} row_shr:{sh} row_mask:0xf bank_mask:0xf bound_ctrl:1")
    for r in range(6):
        a(f"v_max_u32_dpp v{MK0+r}, v{MK0+r}, v{MK0+r} row_bcast:15 row_mask:0xa bank_mask:0xf")
    for r in range(6):
        a(f"v_max_u32_dpp v{MK0+r}, v{MK0+r}, v{MK0+r} row_bcast:31 row_mask:0xc bank_mask:0xf")
    for r in range(6):
        a(f"s_cmp_le_u32 s{S_NR}, {r}\ns_cbranch_scc1 {n}_loaded")
        a(f"v_max_u32 v{MK0+r}, s{S_CARRY}, v{MK0+r}")
        a("s_nop 0")
        a(f"v_readlane_b32 s{S_CARRY}, v{MK0+r}, 63")
        a(f"v_and_b32 v{T2}, 0xfffff, v{MK0+r}")
        a(f"v_add_u32 v{T3}, {64*r}, v{T0}")
        a(f"v_cmp_gt_u32 s[{S_EXM+2*r}:{S_EXM+2*r+1}], s{S_MR}, v{T3}")
        a(f"v_add_u32 v{T2}, v{T2}, v{T3}")
        a(f"v_add_u32 v{T2}, s{S_R0}, v{T2}")
        a(f"s_mov_b64 exec, s[{S_EXM+2*r}:{S_EXM+2*r+1}]")
        a(f"s_cbranch_execz {n}_ld{r}")
        a(f"v_lshlrev_b32 v{T3}, 4, v{T2}")
        a(f"buffer_load_dwordx4 v[{REC(r)}:{REC(r)+3}], v{T3}, s[{S_WS}:{S_WS+3}], s{S_RECA} offen")
        a(f"buffer_load_ubyte v{BIN(r)}, v{T2}, s[{S_WS}:{S_WS+3}], s{S_RECB} offen")
        a(f"{n}_ld{r}:")
        a("s_mov_b64 exec, -1")
    a(f"{n}_loaded:")
    a(f"s_mov_b32 s{S_R0+0}, s{S_R0}")
    a("s_waitcnt vmcnt(0)")
    a(f"s_branch {n}_rank")
    a(f"{n}_end:")
    a("s_endpgm")
    return a.text() + descriptor(K2_NAME, K2_VGPRS, K2_SGPRS)


HEADER = open("gather_scatter__tensor_product_equiv_equiformer__graph.s.ref").read().split("; Override launch")[0]


def build(cfg, only=None):
    lines = [HEADER.rstrip("\n")]
    lines.append(f"; @launch kernel={K1_NAME} grid=(255,1,1) block=({K1_THREADS},1,1) lds={K1_LDS}")
    lines.append(f"; @launch kernel={K2_NAME} grid=({NB},1,1) block=({K2_THREADS},1,1) lds={K2_LDS}")
    s = "\n".join(lines) + '\n.amdgcn_target "amdgcn-amd-amdhsa--gfx950"\n.text\n'
    s += gen_k1(cfg) + gen_k2(cfg)
    return s


if __name__ == "__main__":
    cfg = dict(NPH=1, PF=12)
    for arg in sys.argv[2:]:
        k, v = arg.split("=")
        cfg[k] = int(v)
    TS_ON = bool(cfg.get("TS", 0))
    ABL.update(cfg)
    out = sys.argv[1] if len(sys.argv) > 1 else "k.s"
    open(out, "w").write(build(cfg))
    print("wrote", out, cfg, "K2 lds", K2_LDS)
```
